```python
import torch

def _softmax(x, axis=-1):
    return torch.softmax(x, dim=axis)
def _gelu(x):
    return torch.nn.functional.gelu(x, approximate="tanh")
def _silu(x):
    return torch.nn.functional.silu(x)
def _sigmoid(x):
    return torch.sigmoid(x)
def _layernorm(x, axis=-1, eps=1e-5):
    m = x.mean(dim=axis, keepdim=True)
    v = x.var(dim=axis, keepdim=True, unbiased=False)
    return (x - m) / torch.sqrt(v + eps)
def _scatter_add(tgt, idx, src, axis=0):
    return tgt.clone().index_add_(axis, idx, src)
def _segment_sum(src, seg, n):
    out = torch.zeros((n,) + src.shape[1:], dtype=src.dtype)
    return out.index_add_(0, seg, src)
def _pad(x, pw):
    flat = tuple(v for pair in reversed(pw) for v in pair)
    return torch.nn.functional.pad(x, flat)

kernel_name = 'standalone__self_sup_conv_stem_wavlm__speech'

def setup_inputs():

    _w = (lambda a: (lambda t: t.to(torch.bfloat16) if t.is_floating_point() else t)(torch.as_tensor(a)))
    B, T, D, K = 2, 4000, 256, 15
    scale = (K * D) ** -0.5
    return {
        "x": _w((lambda *s: torch.randn(*s, dtype=torch.bfloat16) * 0.05)(B, T, D)),
        "w": _w((lambda *s: torch.randn(*s, dtype=torch.bfloat16) * 0.05)(K, D, D) * scale),
        "gn_gamma": _w((lambda *s: torch.randn(*s, dtype=torch.bfloat16) * 0.05)(D) * 0.1 + 1.0),
        "gn_beta": _w((lambda *s: torch.randn(*s, dtype=torch.bfloat16) * 0.05)(D) * 0.1),
    }

def reference(x, w, gn_gamma, gn_beta):
    B, T, D = x.shape
    K = w.shape[0]
    s = 2
    L = (T - K) // s + 1
    h = torch.einsum('blc,cd->bld', x[:, 0:s * L:s, :], w[0])
    for i in range(1, K):
        h = h + torch.einsum('blc,cd->bld', x[:, i:i + s * L:s, :], w[i])
    mu = torch.einsum('bld->bd', h)[:, None, :] / L
    var = torch.einsum('bld->bd', (h - mu) ** 2)[:, None, :] / L
    h = (h - mu) / torch.sqrt(var + 1e-5)
    h = h * gn_gamma[None, None, :] + gn_beta[None, None, :]
    return _gelu(h)
```

```python
import sys, math
KN = "standalone__self_sup_conv_stem_wavlm__speech_kernel"
HEADER = """; Kernarg layout for this problem (56 bytes, ptrs only, base s[0:1]):
;   offset  48: d_ws      268435456 bytes workspace"""
import struct
def f2u(x): return struct.unpack("<I", struct.pack("<f", x))[0]

def gen(rot=1, stamps=False):
    L = []; e = L.append
    e(HEADER)
    e("; @launch grid=(256,1,1) block=(256,1,1) lds=163840")
    e('.amdgcn_target "amdgcn-amd-amdhsa--gfx950"')
    e(".text"); e(f".globl {KN}"); e(".p2align 8"); e(f".type {KN},@function"); e(f"{KN}:")
    WREG = 40960; XPAR = 9216; RING = 18432; NS = 5
    nst = [0]
    def stamp():
        if stamps:
            e(f"s_memtime s[{70+2*nst[0]}:{71+2*nst[0]}]"); nst[0] += 1
    if stamps: e("s_memrealtime s[68:69]")
    stamp()
    e("s_cmp_ge_u32 s2, 256"); e("s_cbranch_scc1 L_done")
    e("s_load_dwordx8 s[4:11], s[0:1], 0"); e("s_load_dwordx4 s[12:15], s[0:1], 32"); e("s_load_dwordx2 s[16:17], s[0:1], 48")
    e("v_lshrrev_b32 v1, 6, v0"); e("v_and_b32 v0, 63, v0"); e("v_readfirstlane_b32 s35, v1   ; wave")
    e("s_and_b32 s30, s2, 7"); e("s_lshr_b32 s31, s2, 3")
    e("s_lshr_b32 s34, s30, 2   ; b")
    e("s_and_b32 s32, s30, 2"); e("s_lshl_b32 s32, s32, 3"); e("s_and_b32 s33, s31, 15"); e("s_add_u32 s32, s32, s33  ; mt 0..31")
    e("s_and_b32 s36, s30, 1"); e("s_lshl_b32 s36, s36, 1"); e("s_lshr_b32 s37, s31, 4"); e("s_add_u32 s36, s36, s37 ; nt 0..3")
    if rot:
        e("s_cmp_eq_u32 s33, 15"); e("s_cselect_b32 s38, 7, s33")
    else:
        e("s_mov_b32 s38, 0")
    e(f"s_mul_i32 s39, s35, {WREG}")
    e("v_and_b32 v1, 15, v0   ; m"); e("v_lshrrev_b32 v2, 4, v0  ; g")
    e("v_lshrrev_b32 v3, 3, v0"); e("v_and_b32 v4, 7, v0  ; pos")
    e("v_and_b32 v6, 6, v3"); e("v_xor_b32 v6, v6, v4"); e("v_lshlrev_b32 v6, 4, v6"); e("v_lshl_add_u32 v5, v3, 10, v6")
    e("v_and_b32 v6, 2, v3"); e("v_xor_b32 v6, v6, v4"); e("v_lshlrev_b32 v6, 4, v6"); e("v_lshl_add_u32 v8, v3, 9, v6")
    e("v_xor_b32 v9, 64, v8"); e("v_add_u32 v10, 6144, v8"); e("v_add_u32 v11, 9216, v9"); e("v_add_u32 v9, 3072, v9")
    e("v_lshrrev_b32 v6, 3, v0"); e("v_and_b32 v6, 3, v6"); e("v_xor_b32 v6, s35, v6"); e("v_lshlrev_b32 v6, 5, v6")
    e("v_lshrrev_b32 v7, 2, v1"); e("v_lshl_add_u32 v7, v2, 3, v7"); e("v_lshl_add_u32 v6, v7, 7, v6")
    e("v_and_b32 v7, 3, v0"); e("v_lshl_add_u32 v6, v7, 3, v6"); e(f"s_add_u32 s40, s39, {RING}"); e("v_add_u32 v12, s40, v6")
    e("v_xor_b32 v13, 32, v12"); e("v_xor_b32 v14, 64, v12"); e("v_xor_b32 v15, 0x60, v12")
    e("s_waitcnt lgkmcnt(0)")
    e("s_mul_i32 s41, s34, 2048000"); e("s_add_u32 s20, s4, s41"); e("s_addc_u32 s21, s5, 0"); e("s_mov_b32 s22, 2048000"); e("s_mov_b32 s23, 0x20000")
    e("s_mov_b32 s24, s6"); e("s_mov_b32 s25, s7"); e("s_mov_b32 s26, 1966080"); e("s_mov_b32 s27, 0x20000")
    e("s_mov_b32 s44, s16"); e("s_mov_b32 s45, s17"); e("s_mov_b32 s46, 0x20000"); e("s_mov_b32 s47, 0x20000")
    e("s_mov_b32 s48, s14"); e("s_mov_b32 s49, s15"); e("s_mov_b32 s50, 256"); e("s_mov_b32 s51, 0x20000")
    e("s_mul_i32 s41, s34, 1020416"); e("s_add_u32 s52, s12, s41"); e("s_addc_u32 s53, s13, 0"); e("s_mov_b32 s54, 1020416"); e("s_mov_b32 s55, 0x20000")
    e("s_mov_b32 s56, s8"); e("s_mov_b32 s57, s9"); e("s_mov_b32 s58, 512"); e("s_mov_b32 s59, 0x20000")
    e("s_mov_b32 s60, s10"); e("s_mov_b32 s61, s11"); e("s_mov_b32 s62, 512"); e("s_mov_b32 s63, 0x20000")
    e("s_lshl_b32 s42, s34, 2"); e("s_add_u32 s42, s42, s36   ; group")
    e("s_lshl_b32 s43, s42, 14   ; group*16384")
    e("s_cmp_lg_u32 s35, 0"); e("s_cbranch_scc1 L_noclear")
    e("v_lshlrev_b32 v6, 3, v1"); e("v_lshl_add_u32 v6, v2, 12, v6"); e("s_lshl_b32 s41, s32, 7"); e("s_add_u32 s41, s41, s43")
    e("v_mov_b32 v18, -1"); e("v_mov_b32 v19, -1")
    e("buffer_store_dwordx2 v[18:19], v6, s[44:47], s41 offen sc0 sc1")
    e("L_noclear:")
    e("s_lshl_b32 s41, s36, 7"); e("s_lshl_b32 s64, s35, 5"); e("s_add_u32 s41, s41, s64"); e("v_lshlrev_b32 v7, 1, v1")
    e("buffer_load_ushort v20, v7, s[56:59], s41 offen"); e("buffer_load_ushort v21, v7, s[60:63], s41 offen")
    e("s_lshl_b32 s41, s32, 16  ; l0*1024"); e("s_lshl_b32 s64, s35, 7"); e("s_add_u32 s41, s41, s64")
    e("s_and_b32 s65, s38, 1")
    for ph in range(2):
        e(f"s_mul_i32 s66, s65, {XPAR}"); e("s_add_u32 s66, s66, s39"); e("s_mov_b32 m0, s66")
        e("s_lshl_b32 s67, s65, 9"); e("s_add_u32 s67, s67, s41")
        for blk in range(9):
            e("buffer_load_dwordx4 v5, s[20:23], s67 offen lds")
            if blk < 8:
                e("s_add_u32 m0, m0, 1024"); e("s_add_u32 s67, s67, 8192")
        if ph == 0: e("s_xor_b32 s65, s65, 1")
    e("s_lshl_b32 s28, s35, 15"); e("s_lshl_b32 s64, s36, 7"); e("s_add_u32 s28, s28, s64"); e("s_add_u32 s29, s28, 1966080")
    e("s_lshl_b32 s64, s38, 17"); e("s_add_u32 s28, s28, s64")
    def dma_w(n):
        out = []
        out.append([f"s_add_u32 m0, s40, {(n % NS) * 4096}", "s_nop 0", "buffer_load_dwordx4 v8, s[24:27], s28 offen lds"])
        out.append(["buffer_load_dwordx4 v9, s[24:27], s28 offen offset:1024 lds"])
        out.append(["buffer_load_dwordx4 v10, s[24:27], s28 offen offset:2048 lds"])
        last = ["buffer_load_dwordx4 v11, s[24:27], s28 offen offset:3072 lds"]
        if n % 2 == 0: last += ["s_add_u32 s28, s28, 16384"]
        else: last += [f"s_add_u32 s28, s28, {131072-16384}", "s_cmp_ge_u32 s28, s29", "s_cselect_b32 s64, 1966080, 0", "s_sub_u32 s28, s28, s64"]
        out.append(last)
        return out
    for n in range(NS):
        for grp in dma_w(n):
            for i in grp: e(i)
    def xaddr():
        return ["s_lshr_b32 s64, s38, 1", "s_and_b32 s65, s38, 1", f"s_mul_i32 s65, s65, {XPAR}", "s_add_u32 s65, s65, s39",
                "v_add_u32 v6, s64, v1", "v_and_b32 v7, 6, v6", "v_xor_b32 v7, v7, v2", "v_lshlrev_b32 v7, 4, v7", "v_lshl_add_u32 v7, v6, 7, v7",
                "v_add_u32 v16, s65, v7", "v_xor_b32 v17, 64, v16",
                "s_add_u32 s38, s38, 1", "s_cmp_eq_u32 s38, 15", "s_cselect_b32 s38, 0, s38"]
    ACC = 64; FR = 128
    def xreg(n, lt): return FR + (n & 1) * 32 + lt * 4
    def wreg(n, j): return FR + (n & 1) * 32 + 16 + j * 4
    def reads(n):
        out = []
        for i in range(4):
            r = xreg(n, i); out.append(f"ds_read_b128 v[{r}:{r+3}], v{16 + (n & 1)} offset:{i*2048}")
            r = wreg(n, i)
            out.append(f"ds_read_b64_tr_b16 v[{r}:{r+1}], v{12+i} offset:{(n % NS)*4096}")
            out.append(f"ds_read_b64_tr_b16 v[{r+2}:{r+3}], v{12+i} offset:{(n % NS)*4096 + 512}")
        return out
    for i in xaddr(): e(i)
    stamp()
    e(f"s_waitcnt vmcnt({4*(NS-1)})")
    stamp()
    for i in reads(0): e(i)
    NST = 30
    for n in range(NST):
        e(f"; ---- step {n}")
        fill = []
        if n + 1 < NST:
            if (n + 1) % 2 == 0:
                for i in xaddr(): e(i)
            rem = min(NST - 1, n + NS - 1) - (n + 1)
            e(f"s_waitcnt vmcnt({4*rem}) lgkmcnt(0)")
            fill = [[r] for r in reads(n + 1)]
        else:
            e("s_waitcnt lgkmcnt(0)")
        if n == 1:
            e("s_cmp_lg_u32 s35, 0"); e("s_cbranch_scc1 L_noflag")
            e("s_lshl_b32 s64, s42, 5"); e("s_add_u32 s64, s64, s32"); e("v_mov_b32 v18, 1"); e("v_mov_b32 v19, 0")
            e("s_mov_b64 exec, 1")
            e("buffer_store_byte v18, v19, s[48:51], s64 offen sc0 sc1")
            e("s_mov_b64 exec, -1")
            e("L_noflag:")
        while len(fill) < 12: fill.append([])
        if n + NS < NST: fill += dma_w(n + NS)
        while len(fill) < 16: fill.append([])
        k = 0
        for lt in range(4):
            for j in range(4):
                a = ACC + (j * 4 + lt) * 4
                c = f"v[{a}:{a+3}]" if n > 0 else "0"
                xr = xreg(n, lt); wr = wreg(n, j)
                e(f"v_mfma_f32_16x16x32_bf16 v[{a}:{a+3}], v[{xr}:{xr+3}], v[{wr}:{wr+3}], {c}")
                for i in fill[k]: e(i)
                k += 1
    stamp()
    e("v_and_b32 v6, 7, v0"); e("v_lshlrev_b32 v6, 2, v6"); e("s_lshl_b32 s66, s42, 5")
    e("buffer_load_dword v22, v6, s[48:51], s66 offen sc0 sc1")
    e("v_lshlrev_b32 v7, 4, v0"); e("v_add_u32 v16, s39, v7")
    e("s_nop 4")
    for j in range(1, 4):
        for lt in range(4):
            a = ACC + (j * 4 + lt) * 4
            e(f"ds_write_b128 v16, v[{a}:{a+3}] offset:{(j-1)*4096 + lt*1024}")
    for j in range(1, 4):
        e(f"s_xor_b32 s64, s35, {j}"); e(f"s_mul_i32 s64, s64, {WREG}"); e(f"v_add_u32 v{23+j}, s64, v7")
    e("s_waitcnt lgkmcnt(0)"); e("s_barrier")
    for j in range(1, 4):
        for lt in range(4):
            a = FR + ((j - 1) * 4 + lt) * 4
            e(f"ds_read_b128 v[{a}:{a+3}], v{23+j} offset:{(j-1)*4096 + lt*1024}")
    for j in range(1, 4):
        e(f"s_waitcnt lgkmcnt({(3-j)*4})")
        for i in range(0, 16, 2):
            e(f"v_pk_add_f32 v[{ACC+i}:{ACC+i+1}], v[{ACC+i}:{ACC+i+1}], v[{FR+(j-1)*16+i}:{FR+(j-1)*16+i+1}]")
    stamp()
    e("s_cmp_lg_u32 s32, 31"); e("s_cbranch_scc1 L_nomask")
    for i in range(4, 16): e(f"v_mov_b32 v{ACC+i}, 0")
    e("v_cmp_gt_u32 vcc, 3, v2"); e("v_cmp_gt_u32 s[64:65], 2, v2"); e("s_nop 1")
    e(f"v_cndmask_b32 v{ACC}, 0, v{ACC}, vcc")
    for r in range(1, 4): e(f"v_cndmask_b32 v{ACC+r}, 0, v{ACC+r}, s[64:65]")
    e("L_nomask:")
    e(f"v_pk_add_f32 v[28:29], v[{ACC}:{ACC+1}], v[{ACC+2}:{ACC+3}]")
    e(f"v_pk_mul_f32 v[30:31], v[{ACC}:{ACC+1}], v[{ACC}:{ACC+1}]")
    e(f"v_pk_fma_f32 v[30:31], v[{ACC+2}:{ACC+3}], v[{ACC+2}:{ACC+3}], v[30:31]")
    for i in range(4, 16, 2):
        e(f"v_pk_add_f32 v[28:29], v[28:29], v[{ACC+i}:{ACC+i+1}]")
        e(f"v_pk_fma_f32 v[30:31], v[{ACC+i}:{ACC+i+1}], v[{ACC+i}:{ACC+i+1}], v[30:31]")
    e("v_add_f32 v28, v28, v29"); e("v_add_f32 v30, v30, v31"); e("s_nop 1")
    e("v_permlane32_swap_b32 v28, v30"); e("s_nop 1"); e("v_add_f32 v28, v28, v30")
    e("v_mov_b32 v29, v28"); e("s_nop 1"); e("v_permlane16_swap_b32 v28, v29"); e("s_nop 1"); e("v_add_f32 v28, v28, v29")
    e("v_min_u32 v28, 0xfffffffe, v28")
    e("v_lshrrev_b32 v29, 1, v2"); e("v_lshlrev_b32 v29, 2, v29"); e("v_lshl_add_u32 v29, v1, 3, v29")
    e("s_lshl_b32 s64, s35, 12"); e("s_add_u32 s43, s43, s64"); e("s_lshl_b32 s64, s32, 7"); e("s_add_u32 s64, s64, s43")
    e("s_mov_b32 exec_lo, 0xffff"); e("s_mov_b32 exec_hi, 0xffff")
    e("buffer_store_dword v28, v29, s[44:47], s64 offen sc0 sc1")
    e("s_mov_b64 exec, -1")
    stamp()
    HB = 16384; SS = WREG + 16384
    e("v_mul_u32_u24 v29, 1088, v2"); e("v_lshl_add_u32 v29, v1, 2, v29"); e("s_lshl_b32 s64, s35, 6"); e("v_add_u32 v29, s64, v29")
    for lt in range(4):
        for r in range(4):
            e(f"ds_write_b32 v29, v{ACC+lt*4+r} offset:{HB + (16*lt + r)*272}")
    e("v_mul_u32_u24 v29, 272, v3"); e("v_lshl_add_u32 v29, v4, 5, v29"); e("s_mul_i32 s64, s35, 4352"); e("v_add_u32 v29, s64, v29")
    e("s_waitcnt lgkmcnt(0)"); e("s_barrier")
    for i in range(2):
        for u in range(2):
            a = ACC + i * 8 + u * 4
            e(f"ds_read_b128 v[{a}:{a+3}], v29 offset:{HB + i*8*272 + u*16}")
    e("s_mov_b32 s67, 0x4000")
    e("s_waitcnt vmcnt(1)")
    e("L_flag:")
    e("v_cmp_ne_u32 vcc, 0x01010101, v22"); e("s_cmp_eq_u64 vcc, 0"); e("s_cbranch_scc1 L_flagok")
    e("buffer_load_dword v22, v6, s[48:51], s66 offen sc0 sc1"); e("s_sub_u32 s67, s67, 1"); e("s_cmp_lg_u32 s67, 0"); e("s_waitcnt vmcnt(0)"); e("s_cbranch_scc1 L_flag")
    e("L_flagok:")
    e("v_lshlrev_b32 v7, 3, v0")
    e("s_mov_b32 s67, 0x4000")
    e("L_poll:")
    for i in range(8):
        e(f"buffer_load_dwordx2 v[{FR+2*i}:{FR+2*i+1}], v7, s[44:47], s43 offen offset:{i*512} sc0 sc1")
    e("s_sub_u32 s67, s67, 1"); e("s_cmp_eq_u32 s67, 0"); e("s_cbranch_scc1 L_pollok")
    e("s_waitcnt vmcnt(0)")
    e(f"v_max3_u32 v28, v{FR}, v{FR+1}, v{FR+2}")
    e(f"v_max3_u32 v30, v{FR+3}, v{FR+4}, v{FR+5}")
    for i in range(6, 14, 4):
        e(f"v_max3_u32 v28, v28, v{FR+i}, v{FR+i+1}")
        e(f"v_max3_u32 v30, v30, v{FR+i+2}, v{FR+i+3}")
    e(f"v_max3_u32 v28, v28, v{FR+14}, v{FR+15}")
    e("v_max_u32 v28, v28, v30")
    e("v_cmp_eq_u32 vcc, -1, v28"); e("s_cmp_lg_u64 vcc, 0"); e("s_cbranch_scc1 L_poll")
    e("L_pollok:")
    e("s_waitcnt vmcnt(0)")
    stamp()
    for st in (8, 4, 2):
        for i in range(0, st, 2):
            e(f"v_pk_add_f32 v[{FR+i}:{FR+i+1}], v[{FR+i}:{FR+i+1}], v[{FR+st+i}:{FR+st+i+1}]")
    e("s_nop 1"); e(f"v_permlane32_swap_b32 v{FR}, v{FR+1}"); e("s_nop 1"); e(f"v_add_f32 v28, v{FR}, v{FR+1}")
    e("v_mov_b32 v29, v28"); e("s_nop 1"); e("v_permlane16_swap_b32 v28, v29"); e("s_nop 1"); e("v_add_f32 v28, v28, v29  ; lanes<32: S1, >=32: S2")
    e(f"v_mul_f32 v28, {hex(f2u(1.0/1993))}, v28")
    e("v_mov_b32 v29, v28"); e("s_nop 1"); e("v_permlane32_swap_b32 v28, v29"); e("s_nop 1")
    e("v_fma_f32 v29, -v28, v28, v29"); e("v_max_f32 v29, 0, v29"); e(f"v_add_f32 v29, {hex(f2u(1e-5))}, v29"); e("v_rsq_f32 v29, v29")
    e("v_lshlrev_b32 v20, 16, v20"); e("v_lshlrev_b32 v21, 16, v21")
    e("v_mul_f32 v30, v29, v20   ; scale"); e("v_fma_f32 v31, -v28, v30, v21  ; shift")
    e("v_lshlrev_b32 v29, 2, v1"); e("s_lshl_b32 s64, s35, 6"); e("v_add_u32 v29, s64, v29")
    e(f"ds_write_b32 v29, v30 offset:{SS}"); e(f"ds_write_b32 v29, v31 offset:{SS+256}")
    e("v_lshlrev_b32 v29, 5, v4")
    e("s_waitcnt lgkmcnt(0)"); e("s_barrier")
    for u in range(2):
        e(f"ds_read_b128 v[{32+u*4}:{35+u*4}], v29 offset:{SS + u*16}")
        e(f"ds_read_b128 v[{40+u*4}:{43+u*4}], v29 offset:{SS + 256 + u*16}")
    c0 = -2.0 * math.sqrt(2.0 / math.pi) * math.log2(math.e); c1 = c0 * 0.044715
    e(f"s_mov_b32 s64, {hex(f2u(c1))}"); e(f"s_mov_b32 s65, {hex(f2u(c1))}"); e(f"v_mov_b32 v48, {hex(f2u(c0))}"); e(f"v_mov_b32 v49, {hex(f2u(c0))}")
    e("v_lshlrev_b32 v29, 9, v3"); e("v_lshl_add_u32 v29, v4, 4, v29")
    e("s_lshl_b32 s66, s32, 15"); e("s_lshl_b32 s67, s35, 13"); e("s_add_u32 s66, s66, s67"); e("s_lshl_b32 s67, s36, 7"); e("s_add_u32 s66, s66, s67"); e("s_add_u32 s67, s66, 4096")
    e("s_waitcnt lgkmcnt(0)")
    T = FR
    for i in range(2):
        P = lambda b, k: f"v[{b+k}:{b+k+1}]"
        A = ACC + i * 8
        for k in range(0, 8, 2): e(f"v_pk_fma_f32 {P(A,k)}, {P(A,k)}, {P(32,k)}, {P(40,k)}")
        for k in range(0, 8, 2): e(f"v_pk_mul_f32 {P(T,k)}, {P(A,k)}, {P(A,k)}")
        for k in range(0, 8, 2): e(f"v_pk_fma_f32 {P(T,k)}, {P(T,k)}, s[64:65], v[48:49]")
        for k in range(0, 8, 2): e(f"v_pk_mul_f32 {P(T,k)}, {P(T,k)}, {P(A,k)}")
        for k in range(8): e(f"v_exp_f32 v{T+k}, v{T+k}")
        for k in range(0, 8, 2): e(f"v_pk_add_f32 {P(T,k)}, {P(T,k)}, 1.0 op_sel_hi:[1,0]")
        for k in range(8): e(f"v_rcp_f32 v{T+k}, v{T+k}")
        for k in range(0, 8, 2): e(f"v_pk_mul_f32 {P(T,k)}, {P(T,k)}, {P(A,k)}")
        O = 52 + i * 4
        for k in range(4): e(f"v_cvt_pk_bf16_f32 v{O+k}, v{T+2*k}, v{T+2*k+1}")
        e(f"buffer_store_dwordx4 v[{O}:{O+3}], v29, s[52:55], s{66+i} offen")
    if stamps:
        stamp()
        e("s_waitcnt vmcnt(0)")
        stamp()
        e(f"s_memrealtime s[{70+2*nst[0]}:{71+2*nst[0]}]")
        e("s_waitcnt lgkmcnt(0)")
        e("s_lshl_b32 s64, s2, 2"); e("s_add_u32 s64, s64, s35"); e("s_lshl_b32 s64, s64, 7"); e("s_add_u32 s64, s64, 0x100000")
        e("v_mov_b32 v6, s64")
        n = nst[0] + 2
        for i in range(2 * n): e(f"v_mov_b32 v{64+i}, s{68+i}")
        e("s_mov_b64 exec, 1")
        for i in range(0, 2 * n, 2): e(f"global_store_dwordx2 v6, v[{64+i}:{65+i}], s[16:17] offset:{i*4}")
    e("L_done:"); e("s_endpgm")
    e('.section .rodata,"a"'); e(".p2align 6"); e(f".amdhsa_kernel {KN}")
    e("  .amdhsa_next_free_vgpr 256"); e("  .amdhsa_next_free_sgpr 102"); e("  .amdhsa_accum_offset 256")
    e("  .amdhsa_group_segment_fixed_size 0"); e("  .amdhsa_kernarg_size 56"); e("  .amdhsa_user_sgpr_count 2")
    e("  .amdhsa_user_sgpr_kernarg_segment_ptr 1"); e("  .amdhsa_system_sgpr_workgroup_id_x 1")
    e("  .amdhsa_float_denorm_mode_32 3")
    e(".end_amdhsa_kernel")
    return "\n".join(L) + "\n", nst[0]
if __name__ == "__main__":
    kw = eval("dict(" + (sys.argv[1] if len(sys.argv) > 1 else "") + ")")
    sys.stdout.write(gen(**kw)[0])
```

```python
import sys, math
KN = "standalone__self_sup_conv_stem_wavlm__speech_kernel"
HEADER = """; Kernarg layout for this problem (56 bytes, ptrs only, base s[0:1]):
;   offset  48: d_ws      268435456 bytes workspace"""
import struct
def f2u(x): return struct.unpack("<I", struct.pack("<f", x))[0]

def gen(rot=1, stamps=False, probe=None, pcyc=False):
    L = []; e = L.append
    e(HEADER)
    e("; @launch grid=(256,1,1) block=(256,1,1) lds=163840")
    e('.amdgcn_target "amdgcn-amd-amdhsa--gfx950"')
    e(".text"); e(f".globl {KN}"); e(".p2align 8"); e(f".type {KN},@function"); e(f"{KN}:")
    WREG = 40960; XPAR = 9216; RING = 18432; NS = 5
    nst = [0]
    npr = [0]
    def stamp():
        if probe is not None:
            if npr[0] == 0: e("s_memrealtime s[68:69]"); e("s_memtime s[72:73]")
            if npr[0] == probe: e("s_memrealtime s[70:71]"); e("s_memtime s[74:75]")
            npr[0] += 1
        if stamps:
            e(f"s_memtime s[{70+2*nst[0]}:{71+2*nst[0]}]"); nst[0] += 1
    if stamps: e("s_memrealtime s[68:69]")
    stamp()
    e("s_cmp_ge_u32 s2, 256"); e("s_cbranch_scc1 L_done")
    e("s_load_dwordx8 s[4:11], s[0:1], 0"); e("s_load_dwordx4 s[12:15], s[0:1], 32"); e("s_load_dwordx2 s[16:17], s[0:1], 48")
    e("v_lshrrev_b32 v1, 6, v0"); e("v_and_b32 v0, 63, v0"); e("v_readfirstlane_b32 s35, v1   ; wave")
    e("s_and_b32 s30, s2, 7"); e("s_lshr_b32 s31, s2, 3")
    e("s_lshr_b32 s34, s30, 2   ; b")
    e("s_and_b32 s32, s30, 2"); e("s_lshl_b32 s32, s32, 3"); e("s_and_b32 s33, s31, 15"); e("s_add_u32 s32, s32, s33  ; mt 0..31")
    e("s_and_b32 s36, s30, 1"); e("s_lshl_b32 s36, s36, 1"); e("s_lshr_b32 s37, s31, 4"); e("s_add_u32 s36, s36, s37 ; nt 0..3")
    if rot:
        e("s_cmp_eq_u32 s33, 15"); e("s_cselect_b32 s38, 7, s33")
    else:
        e("s_mov_b32 s38, 0")
    e(f"s_mul_i32 s39, s35, {WREG}")
    e("v_and_b32 v1, 15, v0   ; m"); e("v_lshrrev_b32 v2, 4, v0  ; g")
    e("v_lshrrev_b32 v3, 3, v0"); e("v_and_b32 v4, 7, v0  ; pos")
    e("v_and_b32 v6, 6, v3"); e("v_xor_b32 v6, v6, v4"); e("v_lshlrev_b32 v6, 4, v6"); e("v_lshl_add_u32 v5, v3, 10, v6")
    e("v_and_b32 v6, 2, v3"); e("v_xor_b32 v6, v6, v4"); e("v_lshlrev_b32 v6, 4, v6"); e("v_lshl_add_u32 v8, v3, 9, v6")
    e("v_xor_b32 v9, 64, v8"); e("v_add_u32 v10, 6144, v8"); e("v_add_u32 v11, 9216, v9"); e("v_add_u32 v9, 3072, v9")
    e("v_lshrrev_b32 v6, 3, v0"); e("v_and_b32 v6, 3, v6"); e("v_xor_b32 v6, s35, v6"); e("v_lshlrev_b32 v6, 5, v6")
    e("v_lshrrev_b32 v7, 2, v1"); e("v_lshl_add_u32 v7, v2, 3, v7"); e("v_lshl_add_u32 v6, v7, 7, v6")
    e("v_and_b32 v7, 3, v0"); e("v_lshl_add_u32 v6, v7, 3, v6"); e(f"s_add_u32 s40, s39, {RING}"); e("v_add_u32 v12, s40, v6")
    e("v_xor_b32 v13, 32, v12"); e("v_xor_b32 v14, 64, v12"); e("v_xor_b32 v15, 0x60, v12")
    e("s_waitcnt lgkmcnt(0)")
    e("s_mul_i32 s41, s34, 2048000"); e("s_add_u32 s20, s4, s41"); e("s_addc_u32 s21, s5, 0"); e("s_mov_b32 s22, 2048000"); e("s_mov_b32 s23, 0x20000")
    e("s_mov_b32 s24, s6"); e("s_mov_b32 s25, s7"); e("s_mov_b32 s26, 1966080"); e("s_mov_b32 s27, 0x20000")
    e("s_mov_b32 s44, s16"); e("s_mov_b32 s45, s17"); e("s_mov_b32 s46, 0x20000"); e("s_mov_b32 s47, 0x20000")
    e("s_mov_b32 s48, s14"); e("s_mov_b32 s49, s15"); e("s_mov_b32 s50, 256"); e("s_mov_b32 s51, 0x20000")
    e("s_mul_i32 s41, s34, 1020416"); e("s_add_u32 s52, s12, s41"); e("s_addc_u32 s53, s13, 0"); e("s_mov_b32 s54, 1020416"); e("s_mov_b32 s55, 0x20000")
    e("s_mov_b32 s56, s8"); e("s_mov_b32 s57, s9"); e("s_mov_b32 s58, 512"); e("s_mov_b32 s59, 0x20000")
    e("s_mov_b32 s60, s10"); e("s_mov_b32 s61, s11"); e("s_mov_b32 s62, 512"); e("s_mov_b32 s63, 0x20000")
    e("s_lshl_b32 s42, s34, 2"); e("s_add_u32 s42, s42, s36   ; group")
    e("s_lshl_b32 s43, s42, 14   ; group*16384")
    e("s_cmp_lg_u32 s35, 0"); e("s_cbranch_scc1 L_noclear")
    e("v_lshlrev_b32 v6, 3, v1"); e("v_lshl_add_u32 v6, v2, 12, v6"); e("s_lshl_b32 s41, s32, 7"); e("s_add_u32 s41, s41, s43")
    e("v_mov_b32 v18, -1"); e("v_mov_b32 v19, -1")
    e("buffer_store_dwordx2 v[18:19], v6, s[44:47], s41 offen sc0 sc1")
    e("L_noclear:")
    e("s_lshl_b32 s41, s36, 7"); e("s_lshl_b32 s64, s35, 5"); e("s_add_u32 s41, s41, s64"); e("v_lshlrev_b32 v7, 1, v1")
    e("buffer_load_ushort v20, v7, s[56:59], s41 offen"); e("buffer_load_ushort v21, v7, s[60:63], s41 offen")
    e("s_lshl_b32 s41, s32, 16  ; l0*1024"); e("s_lshl_b32 s64, s35, 7"); e("s_add_u32 s41, s41, s64")
    e("s_and_b32 s65, s38, 1")
    for ph in range(2):
        e(f"s_mul_i32 s66, s65, {XPAR}"); e("s_add_u32 s66, s66, s39"); e("s_mov_b32 m0, s66")
        e("s_lshl_b32 s67, s65, 9"); e("s_add_u32 s67, s67, s41")
        for blk in range(9):
            e("buffer_load_dwordx4 v5, s[20:23], s67 offen lds")
            if blk < 8:
                e("s_add_u32 m0, m0, 1024"); e("s_add_u32 s67, s67, 8192")
        if ph == 0: e("s_xor_b32 s65, s65, 1")
    e("s_lshl_b32 s28, s35, 15"); e("s_lshl_b32 s64, s36, 7"); e("s_add_u32 s28, s28, s64"); e("s_add_u32 s29, s28, 1966080")
    e("s_lshl_b32 s64, s38, 17"); e("s_add_u32 s28, s28, s64")
    def dma_w(n):
        out = []
        out.append([f"s_add_u32 m0, s40, {(n % NS) * 4096}", "s_nop 0", "buffer_load_dwordx4 v8, s[24:27], s28 offen lds"])
        out.append(["buffer_load_dwordx4 v9, s[24:27], s28 offen offset:1024 lds"])
        out.append(["buffer_load_dwordx4 v10, s[24:27], s28 offen offset:2048 lds"])
        last = ["buffer_load_dwordx4 v11, s[24:27], s28 offen offset:3072 lds"]
        if n % 2 == 0: last += ["s_add_u32 s28, s28, 16384"]
        else: last += [f"s_add_u32 s28, s28, {131072-16384}", "s_cmp_ge_u32 s28, s29", "s_cselect_b32 s64, 1966080, 0", "s_sub_u32 s28, s28, s64"]
        out.append(last)
        return out
    for n in range(NS):
        for grp in dma_w(n):
            for i in grp: e(i)
    def xaddr():
        return ["s_lshr_b32 s64, s38, 1", "s_and_b32 s65, s38, 1", f"s_mul_i32 s65, s65, {XPAR}", "s_add_u32 s65, s65, s39",
                "v_add_u32 v6, s64, v1", "v_and_b32 v7, 6, v6", "v_xor_b32 v7, v7, v2", "v_lshlrev_b32 v7, 4, v7", "v_lshl_add_u32 v7, v6, 7, v7",
                "v_add_u32 v16, s65, v7", "v_xor_b32 v17, 64, v16",
                "s_add_u32 s38, s38, 1", "s_cmp_eq_u32 s38, 15", "s_cselect_b32 s38, 0, s38"]
    ACC = 64; FR = 128
    def xreg(n, lt): return FR + (n & 1) * 32 + lt * 4
    def wreg(n, j): return FR + (n & 1) * 32 + 16 + j * 4
    def reads(n):
        out = []
        for i in range(4):
            r = xreg(n, i); out.append(f"ds_read_b128 v[{r}:{r+3}], v{16 + (n & 1)} offset:{i*2048}")
            r = wreg(n, i)
            out.append(f"ds_read_b64_tr_b16 v[{r}:{r+1}], v{12+i} offset:{(n % NS)*4096}")
            out.append(f"ds_read_b64_tr_b16 v[{r+2}:{r+3}], v{12+i} offset:{(n % NS)*4096 + 512}")
        return out
    for i in xaddr(): e(i)
    stamp()
    e(f"s_waitcnt vmcnt({4*(NS-1)})")
    stamp()
    for i in reads(0): e(i)
    NST = 30
    for n in range(NST):
        e(f"; ---- step {n}")
        fill = []
        if n + 1 < NST:
            if (n + 1) % 2 == 0:
                for i in xaddr(): e(i)
            rem = min(NST - 1, n + NS - 1) - (n + 1)
            e(f"s_waitcnt vmcnt({4*rem}) lgkmcnt(0)")
            fill = [[r] for r in reads(n + 1)]
        else:
            e("s_waitcnt lgkmcnt(0)")
        if n == 1:
            e("s_cmp_lg_u32 s35, 0"); e("s_cbranch_scc1 L_noflag")
            e("s_lshl_b32 s64, s42, 5"); e("s_add_u32 s64, s64, s32"); e("v_mov_b32 v18, 1"); e("v_mov_b32 v19, 0")
            e("s_mov_b64 exec, 1")
            e("buffer_store_byte v18, v19, s[48:51], s64 offen sc0 sc1")
            e("s_mov_b64 exec, -1")
            e("L_noflag:")
        while len(fill) < 12: fill.append([])
        if n + NS < NST: fill += dma_w(n + NS)
        while len(fill) < 16: fill.append([])
        k = 0
        for lt in range(4):
            for j in range(4):
                a = ACC + (j * 4 + lt) * 4
                c = f"v[{a}:{a+3}]" if n > 0 else "0"
                xr = xreg(n, lt); wr = wreg(n, j)
                e(f"v_mfma_f32_16x16x32_bf16 v[{a}:{a+3}], v[{xr}:{xr+3}], v[{wr}:{wr+3}], {c}")
                for i in fill[k]: e(i)
                k += 1
    stamp()
    e("v_and_b32 v6, 7, v0"); e("v_lshlrev_b32 v6, 2, v6"); e("s_lshl_b32 s66, s42, 5")
    e("buffer_load_dword v22, v6, s[48:51], s66 offen sc0 sc1")
    e("v_lshlrev_b32 v7, 4, v0"); e("v_add_u32 v16, s39, v7")
    e("s_nop 4")
    for j in range(1, 4):
        for lt in range(4):
            a = ACC + (j * 4 + lt) * 4
            e(f"ds_write_b128 v16, v[{a}:{a+3}] offset:{(j-1)*4096 + lt*1024}")
    for j in range(1, 4):
        e(f"s_xor_b32 s64, s35, {j}"); e(f"s_mul_i32 s64, s64, {WREG}"); e(f"v_add_u32 v{23+j}, s64, v7")
    e("s_waitcnt lgkmcnt(0)"); e("s_barrier")
    for j in range(1, 4):
        for lt in range(4):
            a = FR + ((j - 1) * 4 + lt) * 4
            e(f"ds_read_b128 v[{a}:{a+3}], v{23+j} offset:{(j-1)*4096 + lt*1024}")
    for j in range(1, 4):
        e(f"s_waitcnt lgkmcnt({(3-j)*4})")
        for i in range(0, 16, 2):
            e(f"v_pk_add_f32 v[{ACC+i}:{ACC+i+1}], v[{ACC+i}:{ACC+i+1}], v[{FR+(j-1)*16+i}:{FR+(j-1)*16+i+1}]")
    stamp()
    e("s_cmp_lg_u32 s32, 31"); e("s_cbranch_scc1 L_nomask")
    for i in range(4, 16): e(f"v_mov_b32 v{ACC+i}, 0")
    e("v_cmp_gt_u32 vcc, 3, v2"); e("v_cmp_gt_u32 s[64:65], 2, v2"); e("s_nop 1")
    e(f"v_cndmask_b32 v{ACC}, 0, v{ACC}, vcc")
    for r in range(1, 4): e(f"v_cndmask_b32 v{ACC+r}, 0, v{ACC+r}, s[64:65]")
    e("L_nomask:")
    e(f"v_pk_add_f32 v[28:29], v[{ACC}:{ACC+1}], v[{ACC+2}:{ACC+3}]")
    e(f"v_pk_mul_f32 v[30:31], v[{ACC}:{ACC+1}], v[{ACC}:{ACC+1}]")
    e(f"v_pk_fma_f32 v[30:31], v[{ACC+2}:{ACC+3}], v[{ACC+2}:{ACC+3}], v[30:31]")
    for i in range(4, 16, 2):
        e(f"v_pk_add_f32 v[28:29], v[28:29], v[{ACC+i}:{ACC+i+1}]")
        e(f"v_pk_fma_f32 v[30:31], v[{ACC+i}:{ACC+i+1}], v[{ACC+i}:{ACC+i+1}], v[30:31]")
    e("v_add_f32 v28, v28, v29"); e("v_add_f32 v30, v30, v31"); e("s_nop 1")
    e("v_permlane32_swap_b32 v28, v30"); e("s_nop 1"); e("v_add_f32 v28, v28, v30")
    e("v_mov_b32 v29, v28"); e("s_nop 1"); e("v_permlane16_swap_b32 v28, v29"); e("s_nop 1"); e("v_add_f32 v28, v28, v29")
    e("v_min_u32 v28, 0xfffffffe, v28")
    e("v_lshrrev_b32 v29, 1, v2"); e("v_lshlrev_b32 v29, 2, v29"); e("v_lshl_add_u32 v29, v1, 3, v29")
    e("s_lshl_b32 s64, s35, 12"); e("s_add_u32 s43, s43, s64"); e("s_lshl_b32 s64, s32, 7"); e("s_add_u32 s64, s64, s43")
    e("s_mov_b32 exec_lo, 0xffff"); e("s_mov_b32 exec_hi, 0xffff")
    e("buffer_store_dword v28, v29, s[44:47], s64 offen sc0 sc1")
    e("s_mov_b64 exec, -1")
    stamp()
    HB = 16384; SS = WREG + 16384
    e("v_mul_u32_u24 v29, 1088, v2"); e("v_lshl_add_u32 v29, v1, 2, v29"); e("s_lshl_b32 s64, s35, 6"); e("v_add_u32 v29, s64, v29")
    for lt in range(4):
        for r in range(4):
            e(f"ds_write_b32 v29, v{ACC+lt*4+r} offset:{HB + (16*lt + r)*272}")
    e("v_mul_u32_u24 v29, 272, v3"); e("v_lshl_add_u32 v29, v4, 5, v29"); e("s_mul_i32 s64, s35, 4352"); e("v_add_u32 v29, s64, v29")
    e("s_waitcnt lgkmcnt(0)"); e("s_barrier")
    for i in range(2):
        for u in range(2):
            a = ACC + i * 8 + u * 4
            e(f"ds_read_b128 v[{a}:{a+3}], v29 offset:{HB + i*8*272 + u*16}")
    e("s_mov_b32 s67, 0x4000")
    e("s_waitcnt vmcnt(1)")
    e("L_flag:")
    e("v_cmp_ne_u32 vcc, 0x01010101, v22"); e("s_cmp_eq_u64 vcc, 0"); e("s_cbranch_scc1 L_flagok")
    e("buffer_load_dword v22, v6, s[48:51], s66 offen sc0 sc1"); e("s_sub_u32 s67, s67, 1"); e("s_cmp_lg_u32 s67, 0"); e("s_waitcnt vmcnt(0)"); e("s_cbranch_scc1 L_flag")
    e("L_flagok:")
    e("v_lshlrev_b32 v7, 3, v0")
    e("s_mov_b32 s67, 0x4000")
    e("L_poll:")
    for i in range(8):
        e(f"buffer_load_dwordx2 v[{FR+2*i}:{FR+2*i+1}], v7, s[44:47], s43 offen offset:{i*512} sc0 sc1")
    e("s_sub_u32 s67, s67, 1"); e("s_cmp_eq_u32 s67, 0"); e("s_cbranch_scc1 L_pollok")
    e("s_waitcnt vmcnt(0)")
    e(f"v_max3_u32 v28, v{FR}, v{FR+1}, v{FR+2}")
    e(f"v_max3_u32 v30, v{FR+3}, v{FR+4}, v{FR+5}")
    for i in range(6, 14, 4):
        e(f"v_max3_u32 v28, v28, v{FR+i}, v{FR+i+1}")
        e(f"v_max3_u32 v30, v30, v{FR+i+2}, v{FR+i+3}")
    e(f"v_max3_u32 v28, v28, v{FR+14}, v{FR+15}")
    e("v_max_u32 v28, v28, v30")
    e("v_cmp_eq_u32 vcc, -1, v28"); e("s_cmp_lg_u64 vcc, 0"); e("s_cbranch_scc1 L_poll")
    e("L_pollok:")
    e("s_waitcnt vmcnt(0)")
    stamp()
    for st in (8, 4, 2):
        for i in range(0, st, 2):
            e(f"v_pk_add_f32 v[{FR+i}:{FR+i+1}], v[{FR+i}:{FR+i+1}], v[{FR+st+i}:{FR+st+i+1}]")
    e("s_nop 1"); e(f"v_permlane32_swap_b32 v{FR}, v{FR+1}"); e("s_nop 1"); e(f"v_add_f32 v28, v{FR}, v{FR+1}")
    e("v_mov_b32 v29, v28"); e("s_nop 1"); e("v_permlane16_swap_b32 v28, v29"); e("s_nop 1"); e("v_add_f32 v28, v28, v29  ; lanes<32: S1, >=32: S2")
    e(f"v_mul_f32 v28, {hex(f2u(1.0/1993))}, v28")
    e("v_mov_b32 v29, v28"); e("s_nop 1"); e("v_permlane32_swap_b32 v28, v29"); e("s_nop 1")
    e("v_fma_f32 v29, -v28, v28, v29"); e("v_max_f32 v29, 0, v29"); e(f"v_add_f32 v29, {hex(f2u(1e-5))}, v29"); e("v_rsq_f32 v29, v29")
    e("v_lshlrev_b32 v20, 16, v20"); e("v_lshlrev_b32 v21, 16, v21")
    e("v_mul_f32 v30, v29, v20   ; scale"); e("v_fma_f32 v31, -v28, v30, v21  ; shift")
    e("v_lshlrev_b32 v29, 2, v1"); e("s_lshl_b32 s64, s35, 6"); e("v_add_u32 v29, s64, v29")
    e(f"ds_write_b32 v29, v30 offset:{SS}"); e(f"ds_write_b32 v29, v31 offset:{SS+256}")
    e("v_lshlrev_b32 v29, 5, v4")
    e("s_waitcnt lgkmcnt(0)"); e("s_barrier")
    for u in range(2):
        e(f"ds_read_b128 v[{32+u*4}:{35+u*4}], v29 offset:{SS + u*16}")
        e(f"ds_read_b128 v[{40+u*4}:{43+u*4}], v29 offset:{SS + 256 + u*16}")
    c0 = -2.0 * math.sqrt(2.0 / math.pi) * math.log2(math.e); c1 = c0 * 0.044715
    e(f"s_mov_b32 s64, {hex(f2u(c1))}"); e(f"s_mov_b32 s65, {hex(f2u(c1))}"); e(f"v_mov_b32 v48, {hex(f2u(c0))}"); e(f"v_mov_b32 v49, {hex(f2u(c0))}")
    e("v_lshlrev_b32 v29, 9, v3"); e("v_lshl_add_u32 v29, v4, 4, v29")
    e("s_lshl_b32 s66, s32, 15"); e("s_lshl_b32 s67, s35, 13"); e("s_add_u32 s66, s66, s67"); e("s_lshl_b32 s67, s36, 7"); e("s_add_u32 s66, s66, s67"); e("s_add_u32 s67, s66, 4096")
    e("s_waitcnt lgkmcnt(0)")
    T = FR
    for i in range(2):
        P = lambda b, k: f"v[{b+k}:{b+k+1}]"
        A = ACC + i * 8
        for k in range(0, 8, 2): e(f"v_pk_fma_f32 {P(A,k)}, {P(A,k)}, {P(32,k)}, {P(40,k)}")
        for k in range(0, 8, 2): e(f"v_pk_mul_f32 {P(T,k)}, {P(A,k)}, {P(A,k)}")
        for k in range(0, 8, 2): e(f"v_pk_fma_f32 {P(T,k)}, {P(T,k)}, s[64:65], v[48:49]")
        for k in range(0, 8, 2): e(f"v_pk_mul_f32 {P(T,k)}, {P(T,k)}, {P(A,k)}")
        for k in range(8): e(f"v_exp_f32 v{T+k}, v{T+k}")
        for k in range(0, 8, 2): e(f"v_pk_add_f32 {P(T,k)}, {P(T,k)}, 1.0 op_sel_hi:[1,0]")
        for k in range(8): e(f"v_rcp_f32 v{T+k}, v{T+k}")
        for k in range(0, 8, 2): e(f"v_pk_mul_f32 {P(T,k)}, {P(T,k)}, {P(A,k)}")
        O = 52 + i * 4
        for k in range(4): e(f"v_cvt_pk_bf16_f32 v{O+k}, v{T+2*k}, v{T+2*k+1}")
        e(f"buffer_store_dwordx4 v[{O}:{O+3}], v29, s[52:55], s{66+i} offen")
    if probe is not None:
        stamp(); e("s_waitcnt vmcnt(0)"); stamp()
        e("s_waitcnt lgkmcnt(0)")
        if pcyc:
            e("s_sub_u32 s70, s74, s72"); e("s_lshr_b32 s70, s70, 3")
        else:
            e("s_sub_u32 s70, s70, s68"); e("s_lshl_b32 s70, s70, 1")
        e("s_min_u32 s70, s70, 20000")
        e("s_add_u32 s70, s70, 4000")
        e("L_pad:"); e("s_memrealtime s[72:73]"); e("s_waitcnt lgkmcnt(0)"); e("s_sub_u32 s72, s72, s68"); e("s_cmp_lt_u32 s72, s70"); e("s_cbranch_scc1 L_pad")
    if stamps:
        stamp()
        e("s_waitcnt vmcnt(0)")
        stamp()
        e(f"s_memrealtime s[{70+2*nst[0]}:{71+2*nst[0]}]")
        e("s_waitcnt lgkmcnt(0)")
        e("s_lshl_b32 s64, s2, 2"); e("s_add_u32 s64, s64, s35"); e("s_lshl_b32 s64, s64, 7"); e("s_add_u32 s64, s64, 0x100000")
        e("v_mov_b32 v6, s64")
        n = nst[0] + 2
        for i in range(2 * n): e(f"v_mov_b32 v{64+i}, s{68+i}")
        e("s_mov_b64 exec, 1")
        for i in range(0, 2 * n, 2): e(f"global_store_dwordx2 v6, v[{64+i}:{65+i}], s[16:17] offset:{i*4}")
    e("L_done:"); e("s_endpgm")
    e('.section .rodata,"a"'); e(".p2align 6"); e(f".amdhsa_kernel {KN}")
    e("  .amdhsa_next_free_vgpr 256"); e("  .amdhsa_next_free_sgpr 102"); e("  .amdhsa_accum_offset 256")
    e("  .amdhsa_group_segment_fixed_size 0"); e("  .amdhsa_kernarg_size 56"); e("  .amdhsa_user_sgpr_count 2")
    e("  .amdhsa_user_sgpr_kernarg_segment_ptr 1"); e("  .amdhsa_system_sgpr_workgroup_id_x 1")
    e("  .amdhsa_float_denorm_mode_32 3")
    e(".end_amdhsa_kernel")
    return "\n".join(L) + "\n", nst[0]
if __name__ == "__main__":
    kw = eval("dict(" + (sys.argv[1] if len(sys.argv) > 1 else "") + ")")
    sys.stdout.write(gen(**kw)[0])
```

```python
import sys, math, struct
KN = "standalone__self_sup_conv_stem_wavlm__speech_kernel"
NWAVES = 8
HEADER = """; WavLM conv stem: strided conv (implicit GEMM) + GroupNorm over time + GELU(tanh), one launch.
;   32 out(2,1993,256)bf16  40 debug(256 B, zero at entry)  48 ws"""
def f2u(x): return struct.unpack("<I", struct.pack("<f", x))[0]

BP = 1056; XQ = 18 * BP; RING = 4 * XQ; NSLOT = 21
def slotaddr(n):
    return RING + (n % NSLOT) * 4096 if n < 51 else (n - 51) * 4096
SLAB = []
for G in range(2):
    for par in range(2):
        for c in range(2):
            for q in range(8 - par): SLAB.append((G, par, c, q))
HB = RING + 9 * 4096; HP = 144; SS = HB + 128 * HP
PBASE = 0x20000
MODE = RING + NSLOT * 4096

DEF_STREAM = "x0 w0 u0 w1-15 u1 x1 w16-22 c w23-29 u2 x2 w30-45 u3 x3 w46-59"
def gen(stamps=False, D=8, gs=1, lag=22, mapping=2, stream=DEF_STREAM, stg=None, lead=11, leadS=11, ntx="", ntw="", ntt="",
        rcv=446, prio=1, probe=None, pcyc=False, mid=False, nomfma=False, wage=5, e0=None, cfl='sc1', fast=True, psleep=0, gl=3, noclear=False, sfl='sc1', rfl='sc1'):
    L = []; e = L.append
    e(HEADER)
    e("; @launch grid=(256,1,1) block=(512,1,1) lds=163840")
    e('.amdgcn_target "amdgcn-amd-amdhsa--gfx950"')
    e(".text"); e(f".globl {KN}"); e(".p2align 8"); e(f".type {KN},@function"); e(f"{KN}:")
    nstamp = {"l": 0, "c": 0}
    def bstamp(k):
        if mid == "bar": e(f"{'s_memrealtime' if stamps == 'rt' else 's_memtime'} s[{72+2*k}:{73+2*k}]")
    def stamp(role):
        if mid == "bar" and (nstamp["c"] or nstamp["l"]):
            return
        if role == "b":
            n = max(nstamp.values()); nstamp["l"] = nstamp["c"] = n + 1
        else:
            n = nstamp[role]; nstamp[role] += 1
        if stamps: e(f"{'s_memrealtime' if stamps == 'rt' else 's_memtime'} s[{70+2*n}:{71+2*n}]")
        if probe is not None:
            if n == 0: e("s_memrealtime s[68:69]"); e("s_memtime s[72:73]"); e("s_memrealtime s[70:71]"); e("s_memtime s[74:75]")
            elif (role, n) == probe or (role == "b" and n == probe[1]): e("s_memrealtime s[70:71]"); e("s_memtime s[74:75]")
    items = []
    for tok in stream.split():
        k = tok[0]
        if k == "x":
            if "." in tok: qq, i = tok[1:].split("."); items.append(("x", int(qq), int(i)))
            else: items += [("x", int(tok[1:]), i) for i in range(5)]
        elif k == "w":
            a, _, b = tok[1:].partition("-"); items += [("w", n) for n in range(int(a), int(b or a) + 1)]
        elif k in "tu": items.append((k, int(tok[1:])))
        elif k == "c": items += [("c", int(tok[1:]))] if tok[1:] else [("c", 0), ("c", 1), ("c", 2)]
    pos = {it: i for i, it in enumerate(items)}
    assert all(("w", n) in pos for n in range(60)) and all(("x", q, i) in pos for q in range(4) for i in range(5))
    def passes():
        nf = 60 - lag
        return [("F", range(0, nf)), ("S", range(nf, 60)), ("K", range(nf, 60))]
    mf = []
    for kind, rng in passes():
        halves = ["S", "K"] if kind == "F" else [kind]
        groups = []
        for n in rng:
            g_ = gs if isinstance(gs, int) else gs[kind]
            if n < 16: g_ = 1
            if groups and SLAB[groups[-1][0]][:3] == SLAB[n][:3] and len(groups[-1]) < g_: groups[-1].append(n)
            else: groups.append([n])
        if kind in "SK" and gl > 1:
            tailn = list(rng)[-gl:]
            groups = [[n for n in g if n not in tailn] for g in groups]; groups = [g for g in groups if g] + [tailn]
        xp = "K" if kind == "K" else "A"
        for grp in groups:
            xkey = lambda n, j: ("x", xp, SLAB[n][0], SLAB[n][1], SLAB[n][2], SLAB[n][3] + j)
            if len(grp) == 1:
                for h in halves:
                    for j in range(4): mf.append((h, j, xkey(grp[0], j), ("w", h, grp[0])))
            else:
                for j in range(4):
                    for h in halves:
                        for n in grp: mf.append((h, j, xkey(n, j), ("w", h, n)))
    assert len(mf) == 480
    first = {}; last = {}
    for i, (h, j, xk, wk) in enumerate(mf):
        for k in (wk, xk):
            first.setdefault(k, i); last[k] = i
    rq = []
    for k in sorted(first, key=lambda k: (first[k], k[0] == "x")):
        rq += [(k, 0)] if k[0] == "x" else [(k, 0), (k, 1)]
    def need_item(k):
        if k[0] == "w": return pos[("w", k[2])]
        return max(pos[("x", k[2] * 2 + k[3], i)] for i in range(5))
    if stg is None: stg = [1, 2, 3, 5, 9, 16, 19, 24, 30, 33, 38, 46, 50, 55, 60]
    N = []
    for s in stg:
        n = max(pos[("w", i)] for i in range(s)) + 1
        G, par = SLAB[s - 1][:2]
        n = max(n, max(pos[("x", qq, i)] for qq in range(G * 2 + par + 1) for i in range(5)) + 1)
        N.append(n)
    N[-1] = len(items)
    def stage_of(k):
        ni = need_item(k)
        for s, n in enumerate(N):
            if ni < n: return s
    flag_bar = None
    if ("c", 2) in pos: flag_bar = min(s for s, n in enumerate(N) if max(pos[("c", i)] for i in range(3) if ("c", i) in pos) < n)
    stamp("b")
    e("s_load_dwordx4 s[4:7], s[0:1], 0")
    if stamps: e("s_mov_b32 s67, 0x4000")
    e("s_cmp_ge_u32 s2, 256"); e("s_cbranch_scc1 L_done")
    e("s_load_dwordx8 s[8:15], s[0:1], 16"); e("s_load_dwordx2 s[16:17], s[0:1], 48")
    e("v_lshrrev_b32 v1, 6, v0"); e("v_and_b32 v0, 63, v0"); e("v_readfirstlane_b32 s35, v1   ; wave")
    e("s_and_b32 s30, s2, 1   ; kh")
    if mapping == 2:
        e("s_bfe_u32 s34, s2, 0x10001   ; b"); e("s_bfe_u32 s31, s2, 0x10002"); e("s_xor_b32 s31, s31, s34  ; nth")
        e("s_bfe_u32 s32, s2, 0x40003   ; mt"); e("s_lshr_b32 s33, s2, 7   ; ntl"); e("s_lshl_b32 s36, s31, 1"); e("s_add_u32 s36, s36, s33   ; nt")
    else:
        e("s_bfe_u32 s34, s2, 0x10002   ; b"); e("s_bfe_u32 s31, s2, 0x10001"); e("s_lshl_b32 s31, s31, 3")
        e("s_bfe_u32 s32, s2, 0x30003"); e("s_add_u32 s32, s32, s31   ; mt"); e("s_lshr_b32 s36, s2, 6   ; nt")
    e("v_and_b32 v1, 15, v0   ; m / n"); e("v_lshrrev_b32 v2, 4, v0   ; g")
    e("s_cmp_ge_u32 s35, 4"); e("s_cbranch_scc1 L_compute")
    e("v_lshrrev_b32 v3, 3, v0  ; r"); e("v_and_b32 v4, 7, v0   ; pos")
    e("v_and_b32 v5, 3, v3"); e("v_lshlrev_b32 v5, 10, v5"); e("v_lshl_add_u32 v5, v4, 4, v5")
    e("v_lshrrev_b32 v6, 5, v0"); e("v_lshl_add_u32 v8, v6, 16, v5"); e("s_lshl_b32 s38, s35, 12"); e("v_add_u32 v8, s38, v8   ; vDX")
    e("s_and_b32 s39, s35, 1"); e("s_lshr_b32 s37, s35, 1"); e("s_lshl_b32 s40, s39, 16"); e("s_lshl_b32 s41, s37, 12"); e("s_add_u32 s40, s40, s41"); e("s_add_u32 s40, s40, 0x10000"); e("v_add_u32 v9, s40, v5   ; vDT")
    e("s_lshl_b32 s40, s39, 2"); e("v_and_b32 v7, 2, v3"); e("v_xor_b32 v7, v7, v4"); e("v_xor_b32 v7, s40, v7"); e("v_lshlrev_b32 v7, 4, v7")
    e("v_lshl_add_u32 v7, v3, 9, v7"); e("v_add_u32 v10, s38, v7   ; vDW")
    e("s_lshl_b32 s44, s30, 16"); e("s_lshl_b32 s41, s36, 7"); e("s_add_u32 s44, s44, s41")
    e("s_lshl_b32 s48, s32, 17"); e("s_lshl_b32 s41, s30, 8"); e("s_add_u32 s48, s48, s41")
    e(f"s_mul_i32 s51, s35, {BP}   ; X m0 base")
    e(f"s_mul_i32 s53, s37, {BP}"); e("s_lshl_b32 s41, s39, 9"); e("s_add_u32 s53, s53, s41")
    e("s_lshl_b32 s54, s35, 10   ; W m0 base")
    if mapping == 2: e("s_lshl_b32 s41, s32, 1"); tl = 16
    else: e("s_and_b32 s41, s32, 7"); e("s_lshl_b32 s41, s41, 2"); tl = 32
    e("s_lshl_b32 s40, s37, 5"); e("s_add_u32 s41, s41, s40"); e("s_lshl_b32 s41, s41, 9"); e("s_lshl_b32 s40, s39, 17"); e("s_add_u32 s41, s41, s40")
    e("v_lshlrev_b32 v18, 18, v4"); e("v_lshl_add_u32 v18, v3, 9, v18"); e("v_add_u32 v18, s41, v18   ; vT")
    assert mapping == 2
    e("s_lshl_b32 s41, s32, 1"); e("s_add_u32 s41, s41, s39"); e("s_lshl_b32 s40, s37, 5"); e("s_add_u32 s41, s41, s40"); e("s_lshl_b32 s41, s41, 9")
    e("v_lshl_add_u32 v17, v4, 18, s41   ; vU")
    e("s_mul_i32 s41, s34, 2048000"); e("s_mov_b32 s22, 2048000"); e("s_mov_b32 s23, 0x20000"); e("s_mov_b32 s26, 1966080"); e("s_mov_b32 s27, 0x20000")
    e("s_waitcnt lgkmcnt(0)")
    e("s_add_u32 s20, s4, s41"); e("s_addc_u32 s21, s5, 0"); e("s_mov_b32 s24, s6"); e("s_mov_b32 s25, s7")
    stamp("l")
    def common_epi_setup():
        e("s_mul_i32 s41, s34, 1020416"); e("s_add_u32 s56, s12, s41"); e("s_addc_u32 s57, s13, 0"); e("s_mov_b32 s58, 1020416"); e("s_mov_b32 s59, 0x20000")
        e("s_mov_b32 s60, s16"); e("s_mov_b32 s61, s17"); e(f"s_mov_b32 s62, {PBASE + 256*8192}"); e("s_mov_b32 s63, 0x20000")
        e("s_lshl_b32 s42, s34, 2"); e("s_add_u32 s42, s42, s36"); e("s_lshl_b32 s47, s42, 5"); e("s_lshl_b32 s42, s42, 1"); e("s_add_u32 s42, s42, s30   ; group16")
        e("s_lshl_b32 s43, s42, 13"); e("s_and_b32 s41, s35, 1"); e("s_lshl_b32 s41, s41, 12"); e("s_add_u32 s43, s43, s41")
        e("s_bfe_u32 s39, s35, 0x10001   ; a")
        e("s_lshl_b32 s46, s32, 1"); e("s_add_u32 s46, s46, s39"); e("s_lshl_b32 s46, s46, 7"); e("s_add_u32 s46, s46, s43")
        e("s_lshl_b32 s65, s2, 13"); e("s_and_b32 s41, s35, 3"); e("s_lshl_b32 s41, s41, 11"); e("s_add_u32 s65, s65, s41"); e("s_xor_b32 s45, s65, 0x2000")
        e(f"s_add_u32 s65, s65, {PBASE}   ; outbox"); e(f"s_add_u32 s45, s45, {PBASE}   ; inbox")
        e("v_lshlrev_b32 v24, 4, v0")
        e("v_lshrrev_b32 v25, 1, v2"); e("v_lshlrev_b32 v25, 2, v25"); e("v_lshl_add_u32 v25, v1, 3, v25")
        e("v_lshrrev_b32 v14, 2, v0   ; rr"); e("v_and_b32 v15, 3, v0   ; c4")
        e(f"v_mul_u32_u24 v11, {HP}, v14"); e("v_lshl_add_u32 v11, v15, 5, v11"); e(f"s_mul_i32 s41, s35, {16*HP}"); e(f"s_add_u32 s41, s41, {HB}"); e("v_add_u32 v11, s41, v11")
        e("v_lshlrev_b32 v12, 5, v15"); e(f"v_add_u32 v12, {SS}, v12")
        e("v_lshlrev_b32 v13, 9, v14"); e("v_lshl_add_u32 v13, v15, 4, v13")
        e("s_lshl_b32 s64, s32, 16"); e("s_lshl_b32 s41, s35, 13"); e("s_add_u32 s64, s64, s41"); e("s_lshl_b32 s41, s36, 7"); e("s_add_u32 s64, s64, s41"); e("s_lshl_b32 s41, s30, 6"); e("s_add_u32 s64, s64, s41")
        c0 = -2.0 * math.sqrt(2.0 / math.pi) * math.log2(math.e); c1 = c0 * 0.044715
        e(f"v_mov_b32 v14, {hex(f2u(c0))}"); e(f"v_mov_b32 v15, {hex(f2u(c0))}")
    once = []
    def epi_once():
        if not once:
            once.append(1); common_epi_setup()
            for i in range(4, 8): e(f"v_mov_b32 v{i}, -1")
    def issue(it):
        if it[0] == "c": epi_once()
        if it[0] == "w":
            n = it[1]; G, par, c, q = SLAB[n]
            e(f"s_add_u32 m0, s54, {slotaddr(n)}"); e(f"s_add_u32 s40, s44, {(2*q + par)*131072 + (2*G + c)*16384}")
            e(f"buffer_load_dwordx4 v10, s[24:27], s40 offen {ntw} lds")
        elif it[0] == "x":
            qq, i = it[1], it[2]; G, par = qq >> 1, qq & 1
            if i < 4:
                e(f"s_add_u32 m0, s51, {qq*XQ + i*4*BP}"); e(f"s_add_u32 s40, s48, {G*128 + par*512 + i*16384}")
                e(f"buffer_load_dwordx4 v8, s[20:23], s40 offen {ntx} lds")
            else:
                e(f"s_add_u32 m0, s53, {qq*XQ + 16*BP}"); e(f"s_add_u32 s40, s48, {G*128 + par*512}"); e("s_mov_b32 exec_hi, 0")
                e(f"buffer_load_dwordx4 v9, s[20:23], s40 offen {ntx} lds")
                e("s_mov_b32 exec_hi, -1")
        elif it[0] == "t":
            e(f"s_add_u32 s40, s44, {it[1]*32768}"); e("s_mov_b64 exec, 0xffff" if tl == 16 else "s_mov_b32 exec_hi, 0")
            e(f"buffer_load_dword v19, v18, s[24:27], s40 offen {ntt}"); e("s_mov_b64 exec, -1")
        elif it[0] == "u":
            e(f"s_add_u32 s40, s44, {(it[1] >> 1)*32768 + (it[1] & 1)*131072}"); e("s_mov_b64 exec, 0xff")
            e(f"buffer_load_dword v19, v17, s[24:27], s40 offen {ntt}"); e("s_mov_b64 exec, -1")
        elif it[0] == "c":
            if it[1] < 2: e(f"buffer_store_dwordx4 v[4:7], v24, s[60:63], s65 offen offset:{it[1]*1024} {cfl}")
            else: e(f"buffer_store_dword v4, v25, s[60:63], s46 offen {cfl}")
    loader_mark = len(L); e("@@LOADER@@")
    e("s_lshl_b32 s40, s36, 7"); e("s_lshl_b32 s41, s30, 6"); e("s_add_u32 s40, s40, s41"); e("s_and_b32 s41, s35, 1"); e("s_lshl_b32 s41, s41, 5"); e("s_add_u32 s40, s40, s41")
    e("v_lshl_add_u32 v7, v1, 1, s40")
    e("global_load_ushort v20, v7, s[8:9]"); e("global_load_ushort v21, v7, s[10:11]")
    e("v_lshlrev_b32 v7, 3, v0")
    e("s_and_b32 s41, s35, 1"); e("s_lshl_b32 s41, s41, 6"); e(f"s_add_u32 s41, s41, {SS}"); e("v_lshl_add_u32 v22, v1, 2, s41")
    stamp("l")
    if flag_bar is not None:
        e("s_cmp_lg_u32 s35, 3"); e("s_cbranch_scc1 L_flagdone"); e("s_mov_b32 s67, 0x4000")
        e("s_waitcnt lgkmcnt(0)"); e("s_add_u32 s28, s28, s18"); e("s_add_u32 s29, s29, s19")
        e("L_flag:"); e("s_and_b32 s40, s28, s29"); e("s_bitcmp1_b32 s40, 4"); e("s_cbranch_scc1 L_flagok")
        e("s_mov_b64 s[28:29], 0"); e("s_atomic_add_x2 s[28:29], s[14:15], s47 glc"); e("s_sub_u32 s67, s67, 1"); e("s_cmp_lg_u32 s67, 0"); e("s_waitcnt lgkmcnt(0)"); e("s_cbranch_scc1 L_flag")
        e("L_flagok:")
        e("s_cmp_eq_u32 s30, 0"); e("s_cselect_b32 s40, s28, s29"); e("s_or_b32 s41, s18, s19"); e("s_lshl_b32 s41, s41, 4")
        e("s_cmp_eq_u32 s40, s41"); e(f"s_cselect_b32 s40, {1 if fast else 0}, 0")
        e("v_mov_b32 v27, s40"); e(f"v_mov_b32 v26, {MODE}"); e("ds_write_b32 v26, v27"); e("s_waitcnt lgkmcnt(0)")
        e("L_flagdone:")
    C1 = -2.0 * math.sqrt(2.0 / math.pi) * math.log2(math.e) * 0.044715
    e(f"s_mov_b32 s50, {hex(f2u(C1))}"); e(f"s_mov_b32 s51, {hex(f2u(C1))}")
    e("s_waitcnt vmcnt(0)"); e("v_lshlrev_b32 v20, 16, v20"); e("v_lshlrev_b32 v21, 16, v21")
    e("s_barrier   ; E0")
    e("s_barrier   ; E1")
    stamp("l")
    e("s_cmp_ge_u32 s35, 2"); e("s_cbranch_scc1 L_final")
    e("ds_read_b128 v[48:51], v11"); e("ds_read_b128 v[52:55], v11 offset:16")
    FR = 32
    e("s_mov_b32 s67, 0x4000")
    e("L_poll:")
    for i in range(8): e(f"buffer_load_dwordx2 v[{FR+2*i}:{FR+2*i+1}], v7, s[60:63], s43 offen offset:{i*512} sc1")
    e("s_sub_u32 s67, s67, 1"); e("s_cmp_eq_u32 s67, 0"); e("s_cbranch_scc1 L_pollok")
    e("s_waitcnt vmcnt(0)")
    e(f"v_max3_u32 v28, v{FR}, v{FR+1}, v{FR+2}"); e(f"v_max3_u32 v30, v{FR+3}, v{FR+4}, v{FR+5}")
    for i in range(6, 14, 4):
        e(f"v_max3_u32 v28, v28, v{FR+i}, v{FR+i+1}"); e(f"v_max3_u32 v30, v30, v{FR+i+2}, v{FR+i+3}")
    e(f"v_max3_u32 v28, v28, v{FR+14}, v{FR+15}"); e("v_max_u32 v28, v28, v30")
    e("v_cmp_eq_u32 vcc, -1, v28"); e("s_cbranch_vccnz L_poll")
    e("L_pollok:")
    e("s_waitcnt vmcnt(0)")
    stamp("l")
    for st in (8, 4, 2):
        for i in range(0, st, 2):
            e(f"v_pk_add_f32 v[{FR+i}:{FR+i+1}], v[{FR+i}:{FR+i+1}], v[{FR+st+i}:{FR+st+i+1}]")
    e("s_nop 1"); e(f"v_permlane32_swap_b32 v{FR}, v{FR+1}"); e(f"v_add_f32 v28, v{FR}, v{FR+1}")
    e("v_mov_b32 v29, v28"); e("s_nop 1"); e("v_permlane16_swap_b32 v28, v29"); e("v_add_f32 v28, v28, v29  ; lanes<32: S1, >=32: S2")
    e(f"v_mul_f32 v28, {hex(f2u(1.0/1993))}, v28")
    e("v_mov_b32 v29, v28"); e("s_nop 1"); e("v_permlane32_swap_b32 v28, v29   ; v28 = mean, v29 = E[h^2]")
    e("v_fma_f32 v29, -v28, v28, v29"); e("v_max_f32 v29, 0, v29"); e(f"v_add_f32 v29, {hex(f2u(1e-5))}, v29"); e("v_rsq_f32 v29, v29")
    e("s_nop 0")
    e("v_mul_f32 v30, v29, v20   ; scale"); e("v_fma_f32 v31, -v28, v30, v21  ; shift")
    e("ds_write2_b32 v22, v30, v31 offset0:0 offset1:32")
    e("s_branch L_final2")
    e("L_compute:")
    if prio: e(f"s_setprio {prio}")
    e("s_and_b32 s38, s35, 1   ; c"); e("s_bfe_u32 s39, s35, 0x10001   ; a")
    e(f"v_mul_u32_u24 v3, {BP}, v1"); e("v_lshl_add_u32 v3, v2, 4, v3"); e("s_lshl_b32 s40, s39, 9"); e("v_add_u32 v16, s40, v3")
    e("s_lshl_b32 s40, s30, 1"); e("s_add_u32 s40, s40, s38   ; dtK")
    e("v_bfe_u32 v3, v0, 3, 2"); e("v_xor_b32 v3, s40, v3"); e("v_lshlrev_b32 v3, 5, v3")
    e("v_lshrrev_b32 v4, 2, v1"); e("v_lshl_add_u32 v4, v2, 3, v4"); e("v_lshl_add_u32 v3, v4, 7, v3"); e("v_and_b32 v4, 3, v0"); e("v_lshl_add_u32 v18, v4, 3, v3")
    e("v_xor_b32 v21, 64, v18")
    e(f"v_add_u32 v19, {RING}, v18"); e(f"v_add_u32 v20, {RING+65536}, v18"); e(f"v_add_u32 v22, {RING}, v21"); e(f"v_add_u32 v23, {RING+65536}, v21")
    e(f"v_mul_u32_u24 v26, {16*HP}, v2"); e("v_lshl_add_u32 v26, v1, 2, v26"); e(f"s_mul_i32 s41, s39, {64*HP}"); e("s_lshl_b32 s40, s38, 6"); e("s_add_u32 s41, s41, s40"); e(f"s_add_u32 s41, s41, {HB}"); e("v_add_u32 v26, s41, v26   ; H write")
    e("s_waitcnt lgkmcnt(0)")
    common_epi_setup()
    e(f"s_mov_b32 s50, {hex(f2u(C1))}"); e(f"s_mov_b32 s51, {hex(f2u(C1))}"); e(f"v_mov_b32 v27, {MODE}")
    e("s_lshl_b32 s49, s32, 1"); e("s_add_u32 s49, s49, s39")
    ACC = {"K": 32, "S": 48}
    PR = 64; PU = 72
    POOL0 = 88; NPOOL = 40
    free = list(range(NPOOL)); reg = {}
    lds_at = []
    done_upto = [0]; cur_stage = [-1]; bar_done = []; opidx = {}
    def barrier():
        cur_stage[0] += 1; k = cur_stage[0]
        if k == 0: stamp("c")
        bstamp(k)
        e(f"s_barrier   ; stage {k}")
        if k == 0: stamp("c")
        bar_done.append(done_upto[0])
    def emit_read(op, i):
        k, part = op
        nb = 0
        while cur_stage[0] < stage_of(k): barrier(); nb += 1
        if part == 0: reg[k] = POOL0 + 4 * free.pop(0)
        r = reg[k]
        if k[0] == "x":
            _, _, G, par, c, s = k
            e(f"ds_read_b128 v[{r}:{r+3}], v16 offset:{(2*G + par)*XQ + (s >> 2)*BP + (s & 3)*128 + c*64}")
        else:
            _, h, n = k
            sa = slotaddr(n)
            bi, off = (0, sa) if sa < RING else ((1, sa - RING) if sa - RING < 65536 else (2, sa - RING - 65536))
            e(f"ds_read_b64_tr_b16 v[{r+2*part}:{r+2*part+1}], v{(18 if h == 'K' else 21) + bi} offset:{off + 512*part}")
        lds_at.append(i); opidx[k] = len(lds_at)
        return 1 + nb
    extra = {}
    def add_extra(i, ins): extra.setdefault(i, []).extend(ins)
    lastS = {j: max(i for i, m_ in enumerate(mf) if m_[0] == "S" and m_[1] == j) for j in range(4)}
    t = 0
    for j in range(4):
        t = max(t, lastS[j] + 8); a = ACC["S"] + 4 * j
        add_extra(t, [f"v_cvt_pk_bf16_f32 v{PU+2*j}, v{a}, v{a+1}", f"v_cvt_pk_bf16_f32 v{PU+2*j+1}, v{a+2}, v{a+3}"]); t += 1
        add_extra(t, [f"v_min_u32 v{PU+2*j}, -2, v{PU+2*j}", f"v_min_u32 v{PU+2*j+1}, -2, v{PU+2*j+1}"]); t += 1
        if j & 1:
            add_extra(t, [f"buffer_store_dwordx4 v[{PU+2*j-2}:{PU+2*j+1}], v24, s[60:63], s65 offen offset:{(j >> 1)*1024} {sfl}"]); t += 1
    e0_at = rcv - 1 if e0 is None else e0
    assert t < rcv and e0_at < rcv
    rl = [f"buffer_load_dwordx4 v[{PR}:{PR+3}], v24, s[60:63], s45 offen {rfl}", f"buffer_load_dwordx4 v[{PR+4}:{PR+7}], v24, s[60:63], s45 offen offset:1024 {rfl}"]
    chk = [f"v_max3_u32 v4, v{PR}, v{PR+1}, v{PR+2}", f"v_max3_u32 v5, v{PR+3}, v{PR+4}, v{PR+5}", f"v_max3_u32 v4, v4, v{PR+6}, v{PR+7}", "v_max_u32 v4, v4, v5", "v_cmp_eq_u32 vcc, -1, v4"]
    add_extra(rcv, rl[:1]); add_extra(rcv + 1, rl[1:])
    started = set(); qi = 0; maxlive = 0; nwaits = 0
    for i, (h, j, xk, wk) in enumerate(mf):
        while qi < len(rq) and first[rq[qi][0]] <= (i + 3 if i == 0 else i):
            emit_read(rq[qi], i - 1); qi += 1
        need = max(opidx[xk], opidx[wk])
        if need > done_upto[0]:
            while need < len(lds_at) and lds_at[need] <= i - wage: need += 1
            n = min(15, len(lds_at) - need)
            e(f"s_waitcnt lgkmcnt({n})"); done_upto[0] = len(lds_at) - n; nwaits += 1
        a = ACC[h] + 4 * j
        c = f"v[{a}:{a+3}]" if (h, j) in started else "0"
        if not nomfma or (h, j) not in started:
            e(f"v_mfma_f32_16x16x32_bf16 v[{a}:{a+3}], v[{reg[xk]}:{reg[xk]+3}], v[{reg[wk]}:{reg[wk]+3}], {c}")
        started.add((h, j))
        for k in (xk, wk):
            if last[k] == i: free.append((reg[k] - POOL0) // 4)
        nfill = 0
        while qi < len(rq) and free and len(lds_at) - done_upto[0] <= 14 and nfill < 2:
            slack = min(first[rq[qi + d][0]] - D - d for d in range(min(16, len(rq) - qi)))
            if slack <= i - (2 if nfill else 0):
                nfill += emit_read(rq[qi], i); qi += 1
            else: break
        maxlive = max(maxlive, NPOOL - len(free))
        for ins in extra.get(i, []): e(ins)
        if i == e0_at:
            assert cur_stage[0] == len(N) - 1
            assert all(opidx[k] <= done_upto[0] for k in first if k[0] == "w" and 30 <= k[2] < 35)
            e("s_barrier   ; E0")
            e("ds_read_b32 v28, v27"); lds_at.append(i); mode_op = len(lds_at)
        if mid and i in (119, 239, 299, 359, 419): stamp("c")
    stamp("c")
    A = ACC["K"]
    assert done_upto[0] >= mode_op
    e("v_readfirstlane_b32 s52, v28")
    e("s_waitcnt vmcnt(0)")
    for ins in chk: e(ins)
    e("s_cbranch_vccnz L_rcvslow"); e("L_rcvok:")
    e("s_cmp_eq_u32 s49, 31")
    for i in range(8):
        e(f"v_lshlrev_b32 v{PU+2*i}, 16, v{PR+i}"); e(f"v_and_b32 v{PU+2*i+1}, 0xffff0000, v{PR+i}")
        e(f"v_pk_add_f32 v[{A+2*i}:{A+2*i+1}], v[{A+2*i}:{A+2*i+1}], v[{PU+2*i}:{PU+2*i+1}]")
    e("s_cbranch_scc1 L_mask"); e("L_maskok:")
    e(f"v_pk_add_f32 v[28:29], v[{A}:{A+1}], v[{A+2}:{A+3}]")
    e(f"v_pk_mul_f32 v[30:31], v[{A}:{A+1}], v[{A}:{A+1}]")
    e(f"v_pk_fma_f32 v[30:31], v[{A+2}:{A+3}], v[{A+2}:{A+3}], v[30:31]")
    for i in range(4, 16, 2):
        e(f"v_pk_add_f32 v[28:29], v[28:29], v[{A+i}:{A+i+1}]")
        e(f"v_pk_fma_f32 v[30:31], v[{A+i}:{A+i+1}], v[{A+i}:{A+i+1}], v[30:31]")
    e("v_add_f32 v28, v28, v29"); e("v_add_f32 v30, v30, v31"); e("s_nop 1")
    e("v_permlane32_swap_b32 v28, v30"); e("v_add_f32 v28, v28, v30")
    e("v_mov_b32 v29, v28"); e("s_nop 1"); e("v_permlane16_swap_b32 v28, v29"); e("v_add_f32 v28, v28, v29")
    e("s_cmp_eq_u32 s52, 0")
    e("v_min_u32 v28, -2, v28")
    e("s_cbranch_scc1 L_pubfar")
    e("buffer_store_dword v28, v25, s[60:63], s46 offen"); e("L_pubok:")
    stamp("c")
    for j in range(4):
        for r in range(4): e(f"ds_write_b32 v26, v{A+4*j+r} offset:{(4*r + j)*HP}")
    e("s_waitcnt lgkmcnt(0)")
    e("s_barrier   ; E1")
    e("L_final:")
    e("ds_read_b128 v[48:51], v11"); e("ds_read_b128 v[52:55], v11 offset:16")
    e("L_final2:")
    e("s_waitcnt lgkmcnt(0)")
    e("s_barrier   ; E2")
    stamp("b")
    for u in range(2):
        e(f"ds_read_b128 v[{32+u*4}:{35+u*4}], v12 offset:{u*16}"); e(f"ds_read_b128 v[{40+u*4}:{43+u*4}], v12 offset:{128 + u*16}")
    P = lambda b, k: f"v[{b+k}:{b+k+1}]"
    A = 48; T = 56
    e("s_waitcnt lgkmcnt(2)")
    for k in range(0, 8, 2):
        if k == 4: e("s_waitcnt lgkmcnt(0)")
        e(f"v_pk_fma_f32 {P(A,k)}, {P(A,k)}, {P(32,k)}, {P(40,k)}")
    for k in range(0, 8, 2): e(f"v_pk_mul_f32 {P(T,k)}, {P(A,k)}, {P(A,k)}")
    for k in range(0, 8, 2): e(f"v_pk_fma_f32 {P(T,k)}, {P(T,k)}, s[50:51], v[14:15]")
    for k in range(0, 8, 2): e(f"v_pk_mul_f32 {P(T,k)}, {P(T,k)}, {P(A,k)}")
    for k in range(8): e(f"v_exp_f32 v{T+k}, v{T+k}")
    for k in range(0, 8, 2): e(f"v_pk_add_f32 {P(T,k)}, {P(T,k)}, 1.0 op_sel_hi:[1,0]")
    for k in range(8): e(f"v_rcp_f32 v{T+k}, v{T+k}")
    for k in range(0, 8, 2): e(f"v_pk_mul_f32 {P(T,k)}, {P(T,k)}, {P(A,k)}")
    for k in range(4): e(f"v_cvt_pk_bf16_f32 v{32+k}, v{T+2*k}, v{T+2*k+1}")
    e("buffer_store_dwordx4 v[32:35], v13, s[56:59], s64 offen")
    if probe is not None:
        stamp("b"); e("s_waitcnt vmcnt(0)"); stamp("b"); e("s_waitcnt lgkmcnt(0)")
        if pcyc: e("s_sub_u32 s70, s74, s72"); e("s_lshr_b32 s70, s70, 3")
        else: e("s_sub_u32 s70, s70, s68"); e("s_lshl_b32 s70, s70, 1")
        e("s_min_u32 s70, s70, 20000"); e("s_add_u32 s70, s70, 4000")
        e("L_pad:"); e("s_memrealtime s[72:73]"); e("s_waitcnt lgkmcnt(0)"); e("s_sub_u32 s72, s72, s68"); e("s_cmp_lt_u32 s72, s70"); e("s_cbranch_scc1 L_pad")
    if stamps:
        stamp("b"); e("s_waitcnt vmcnt(0)"); stamp("b")
        if mid == "bar": nstamp["c"] = len(N) + 1; assert len(N) <= 15
        n = nstamp["c"]
        e("s_waitcnt lgkmcnt(0)")
        e("s_lshl_b32 s64, s2, 3"); e("s_add_u32 s64, s64, s35"); e("s_lshl_b32 s64, s64, 7"); e("s_add_u32 s64, s64, 0x1000000")
        e("v_mov_b32 v6, s64")
        for i in range(2 * n): e(f"v_mov_b32 v{64+i}, s{70+i}")
        e("s_mov_b64 exec, 1")
        if mid != "bar": e("v_mov_b32 v8, s67"); e("v_mov_b32 v9, 0"); e("global_store_dwordx2 v6, v[8:9], s[16:17] offset:120")
        for i in range(0, 2 * n, 2): e(f"global_store_dwordx2 v6, v[{64+i}:{65+i}], s[16:17] offset:{i*4}")
    e("L_done:"); e("s_endpgm")
    e("L_rcvslow:"); e("s_mov_b32 s67, 0x4000")
    e("L_rcvloop:")
    if psleep: e(f"s_sleep {psleep}")
    for i in rl: e(i)
    e("s_sub_u32 s67, s67, 1"); e("s_cmp_eq_u32 s67, 0"); e("s_waitcnt vmcnt(0)"); e("s_cbranch_scc1 L_rcvok")
    for i in chk: e(i)
    e("s_cmp_lg_u64 vcc, 0"); e("s_cbranch_scc1 L_rcvloop"); e("s_branch L_rcvok")
    e("L_pubfar:"); e("buffer_store_dword v28, v25, s[60:63], s46 offen sc1"); e("s_branch L_pubok")
    e("L_mask:")
    A = ACC["K"]
    e("v_cmp_eq_u32 vcc, 0, v2"); e("s_nop 1")
    for j in range(4):
        for r in range(4):
            if 4 * r + j <= 8: e(f"v_cndmask_b32 v{A+4*j+r}, 0, v{A+4*j+r}, vcc")
            else: e(f"v_mov_b32 v{A+4*j+r}, 0")
    e("s_branch L_maskok")
    tailL = L[loader_mark + 1:]; del L[loader_mark:]
    def free_after(it):
        if it[0] != "w" or it[1] < NSLOT: return -1
        n = it[1]
        if n < 51: keys = [k for k in opidx if k[0] == "w" and k[2] == n - NSLOT]
        else: keys = [k for k in opidx if k[0] == "x" and k[2] == 0]
        m_ = max(opidx[k] for k in keys)
        for b, d in enumerate(bar_done):
            if d >= m_: return b
        raise Exception(f"slot for {it} never freed")
    I = 0; plan = []
    for k, n in enumerate(N):
        ld = lead[min(k, len(lead) - 1)] if isinstance(lead, (list, tuple)) else (lead if stg[k] < 26 else leadS)
        tgt = min(len(items), n + ld)
        while I < tgt and free_after(items[I]) < k:
            issue(items[I]); I += 1
            if I == 9: epi_once()
        assert I >= n, (k, I, n)
        plan.append((k, n, I))
        if k == 0: epi_once()
        e(f"s_waitcnt vmcnt({I - n})")
        bstamp(k)
        e(f"s_barrier   ; stage {k}")
        if k == flag_bar:
            e("s_cmp_lg_u32 s35, 3"); e("s_cbranch_scc1 L_noflag")
            e("s_getreg_b32 s40, hwreg(HW_REG_XCC_ID, 0, 4)"); e("s_mul_i32 s41, s40, s40"); e("s_lshl_b32 s41, s41, 13"); e("s_lshl_b32 s40, s40, 5"); e("s_add_u32 s40, s40, s41"); e("s_add_u32 s40, s40, 1")
            e("s_cmp_eq_u32 s30, 0"); e("s_cselect_b32 s18, s40, 0"); e("s_cselect_b32 s19, 0, s40"); e("s_mov_b64 s[28:29], s[18:19]")
            e("s_atomic_add_x2 s[28:29], s[14:15], s47 glc"); e("L_noflag:")
    e(f"; plan {plan} maxlive {maxlive} waits {nwaits} flagbar {flag_bar}")
    L += tailL
    e('.section .rodata,"a"'); e(".p2align 6"); e(f".amdhsa_kernel {KN}")
    e("  .amdhsa_next_free_vgpr 256"); e("  .amdhsa_next_free_sgpr 102"); e("  .amdhsa_accum_offset 256")
    e("  .amdhsa_group_segment_fixed_size 0"); e("  .amdhsa_kernarg_size 56"); e("  .amdhsa_user_sgpr_count 2")
    e("  .amdhsa_user_sgpr_kernarg_segment_ptr 1"); e("  .amdhsa_system_sgpr_workgroup_id_x 1")
    e("  .amdhsa_float_denorm_mode_32 3")
    e(".end_amdhsa_kernel")
    return "\n".join(L) + "\n", nstamp["c"]
if __name__ == "__main__":
    kw = eval("dict(" + (sys.argv[1] if len(sys.argv) > 1 else "") + ")")
    sys.stdout.write(gen(**kw)[0])
```

```python
import sys, math, struct, subprocess, os, tempfile
KN = "standalone__self_sup_conv_stem_wavlm__speech_kernel"
NWAVES = 8
HEADER = """; WavLM conv stem: strided conv (implicit GEMM) + GroupNorm over time + GELU(tanh), one launch.
;   32 out(2,1993,256)bf16  40 debug(256 B, zero at entry)  48 ws"""
def f2u(x): return struct.unpack("<I", struct.pack("<f", x))[0]

BP = 1056; XQ = 18 * BP; RING = 4 * XQ; NSLOT = 21
def slotaddr(n):
    return RING + (n % NSLOT) * 4096 if n < 51 else (n - 51) * 4096
SLAB = [(G, par, c, q) for G in range(2) for par in range(2) for c in range(2) for q in range(8 - par)]
HB = RING + 9 * 4096; HP = 144; SS = HB + 128 * HP
PBASE = 0x20000
MODE = RING + NSLOT * 4096
C0 = -2.0 * math.sqrt(2.0 / math.pi) * math.log2(math.e); C1 = C0 * 0.044715

DEF_STREAM = "x0 w0 u0 w1-15 u1 x1 w16-22 c w23-29 u2 x2 w30-45 u3 x3 w46-59"
DEF_STG = [1, 2, 3, 5, 9, 16, 19, 24, 30, 33, 38, 46, 50, 55, 60]

def addr_of_lines(src):
    d = tempfile.mkdtemp()
    open(d + "/a.s", "w").write(src)
    subprocess.run(["clang", "-x", "assembler", "-target", "amdgcn-amd-amdhsa", "-mcpu=gfx950", "-c", d + "/a.s", "-o", d + "/a.o"], check=True)
    out = subprocess.run(["llvm-objdump", "-d", "--mcpu=gfx950", d + "/a.o"], capture_output=True, text=True).stdout
    res = []; on = False
    for ln in out.splitlines():
        if "<L_compute>:" in ln: on = True; base = int(ln.split()[0], 16)
        elif on and "//" in ln: res.append(int(ln.split("//")[1].split(":")[0], 16) - base)
    return res

def gen(warm=True, **kw):
    src, n = gen1(pads=None, warm=warm, **kw)
    if not warm: return src, n
    lines = src.split("\n")
    i0 = lines.index("L_compute:")
    isins = lambda s: s and not s.startswith((";", ".", " .")) and not s.endswith(":") and not s.startswith("  .")
    idx = [i for i in range(i0, len(lines)) if isins(lines[i])]
    ad = addr_of_lines(src.replace("L_pad1", "L_compute").replace("L_pad2", "L_compute"))
    extra = 0
    ins = []
    for p in (1, 2):
        k = next(k for k, a in enumerate(ad) if a + extra >= 4096 * p)
        ins.append((idx[k], p)); extra += 4
    for i, p in reversed(ins):
        lines[i:i] = [f"L_pad{p}:", "s_cbranch_execz L_compute"]
    return "\n".join(lines), n

def gen1(pads, warm, stamps=False, D=8, gs=1, lag=22, stream=DEF_STREAM, stg=None, lead=11, ntx="", ntw="", ntt="",
         rcv=436, rchk=462, prio=1, probe=None, pcyc=False, mid=False, wage=5, e0=None, fast=True, gl=4, pmul=3, glS=3):
    L = []; e = L.append
    e(HEADER)
    e("; @launch grid=(256,1,1) block=(512,1,1) lds=163840")
    e('.amdgcn_target "amdgcn-amd-amdhsa--gfx950"')
    e(".text"); e(f".globl {KN}"); e(".p2align 8"); e(f".type {KN},@function"); e(f"{KN}:")
    nstamp = {"l": 0, "c": 0}
    clk = 's_memrealtime' if stamps == 'rt' else 's_memtime'
    def bstamp(k):
        if mid == "bar": e(f"{clk} s[{72+2*k}:{73+2*k}]")
    def stamp(role):
        if mid == "bar" and (nstamp["c"] or nstamp["l"]): return
        if role == "b":
            n = max(nstamp.values()); nstamp["l"] = nstamp["c"] = n + 1
        else:
            n = nstamp[role]; nstamp[role] += 1
        if stamps: e(f"{clk} s[{70+2*n}:{71+2*n}]")
        if probe is not None:
            if n == 0: e("s_memrealtime s[68:69]"); e("s_memtime s[72:73]"); e("s_memrealtime s[70:71]"); e("s_memtime s[74:75]")
            elif (role, n) == probe or (role == "b" and n == probe[1]): e("s_memrealtime s[70:71]"); e("s_memtime s[74:75]")
    items = []
    for tok in stream.split():
        k = tok[0]
        if k == "x":
            if "." in tok: qq, i = tok[1:].split("."); items.append(("x", int(qq), int(i)))
            else: items += [("x", int(tok[1:]), i) for i in range(5)]
        elif k == "w":
            a, _, b = tok[1:].partition("-"); items += [("w", n) for n in range(int(a), int(b or a) + 1)]
        elif k == "u": items.append((k, int(tok[1:])))
        elif k == "c": items += [("c", int(tok[1:]))] if tok[1:] else [("c", 0), ("c", 1), ("c", 2)]
    pos = {it: i for i, it in enumerate(items)}
    assert all(("w", n) in pos for n in range(60)) and all(("x", q, i) in pos for q in range(4) for i in range(5)) and all(("c", i) in pos for i in range(3))
    has_u = any(it[0] == "u" for it in items)
    nf = 60 - lag
    mf = []
    for kind, rng in (("F", range(0, nf)), ("S", range(nf, 60)), ("K", range(nf, 60))):
        halves = ["S", "K"] if kind == "F" else [kind]
        groups = []
        for n in rng:
            g_ = gs if isinstance(gs, int) else gs[kind]
            if n < 8: g_ = 1
            if groups and SLAB[groups[-1][0]][:3] == SLAB[n][:3] and len(groups[-1]) < g_: groups[-1].append(n)
            else: groups.append([n])
        gl_ = {"S": glS, "K": gl, "F": 1}[kind]
        if gl_ > 1:
            tailn = list(rng)[-gl_:]
            groups = [[n for n in g if n not in tailn] for g in groups]; groups = [g for g in groups if g] + [tailn]
        xp = "K" if kind == "K" else "A"
        for grp in groups:
            xkey = lambda n, j: ("x", xp, SLAB[n][0], SLAB[n][1], SLAB[n][2], SLAB[n][3] + j)
            if len(grp) == 1:
                for h in halves:
                    for j in range(4): mf.append((h, j, xkey(grp[0], j), ("w", h, grp[0])))
            else:
                for j in range(4):
                    for h in halves:
                        for n in grp: mf.append((h, j, xkey(n, j), ("w", h, n)))
    assert len(mf) == 480
    first = {}; last = {}
    for i, (h, j, xk, wk) in enumerate(mf):
        for k in (wk, xk):
            first.setdefault(k, i); last[k] = i
    rq = []
    for k in sorted(first, key=lambda k: (first[k], k[0] == "x")):
        rq += [(k, 0)] if k[0] == "x" else [(k, 0), (k, 1)]
    def need_item(k):
        if k[0] == "w": return pos[("w", k[2])]
        return max(pos[("x", k[2] * 2 + k[3], i)] for i in range(5))
    if stg is None: stg = DEF_STG
    N = []
    for s in stg:
        n = max(pos[("w", i)] for i in range(s)) + 1
        G, par = SLAB[s - 1][:2]
        n = max(n, max(pos[("x", qq, i)] for qq in range(G * 2 + par + 1) for i in range(5)) + 1)
        N.append(n)
    N[-1] = len(items)
    def stage_of(k):
        ni = need_item(k)
        for s, n in enumerate(N):
            if ni < n: return s
    flag_bar = min(s for s, n in enumerate(N) if max(pos[("c", i)] for i in range(3)) < n)
    stamp("b")
    e("s_load_dwordx4 s[4:7], s[0:1], 0")
    if stamps: e("s_mov_b32 s67, 0x4000")
    e("s_cmp_ge_u32 s2, 256"); e("s_cbranch_scc1 L_exit")
    e("v_readfirstlane_b32 s35, v0")
    e("s_load_dwordx8 s[8:15], s[0:1], 16"); e("s_load_dwordx2 s[16:17], s[0:1], 48")
    e("v_and_b32 v0, 63, v0"); e("s_lshr_b32 s35, s35, 6   ; wave")
    e("s_cmp_lt_u32 s35, 4"); e("s_cbranch_scc1 L_loader")
    if warm:
        e("s_mov_b64 exec, 0")
        e("s_cmp_eq_u32 s35, 5"); e("s_cbranch_scc1 L_pad1"); e("s_cmp_eq_u32 s35, 6"); e("s_cbranch_scc1 L_pad2")
    e("s_branch L_compute")
    e("L_exit:"); e("s_endpgm")
    e("L_loader:")
    def ids():
        e("s_and_b32 s30, s2, 1   ; kh"); e("s_bfe_u32 s34, s2, 0x10001   ; b"); e("s_bfe_u32 s31, s2, 0x10002"); e("s_xor_b32 s31, s31, s34  ; nth")
        e("s_bfe_u32 s32, s2, 0x40003   ; mt"); e("s_lshr_b32 s33, s2, 7   ; ntl"); e("s_lshl_b32 s36, s31, 1"); e("s_add_u32 s36, s36, s33   ; nt")
    def common_epi_setup():
        e("v_and_b32 v1, 15, v0   ; n"); e("v_lshrrev_b32 v2, 4, v0   ; g")
        e("s_mul_i32 s41, s34, 1020416"); e("s_add_u32 s56, s12, s41"); e("s_addc_u32 s57, s13, 0"); e("s_mov_b32 s58, 1020416"); e("s_mov_b32 s59, 0x20000")
        e("s_mov_b32 s60, s16"); e("s_mov_b32 s61, s17"); e(f"s_mov_b32 s62, {PBASE + 256*8192}"); e("s_mov_b32 s63, 0x20000")
        e("s_lshl_b32 s42, s34, 2"); e("s_add_u32 s42, s42, s36"); e("s_lshl_b32 s47, s42, 5"); e("s_lshl_b32 s42, s42, 1"); e("s_add_u32 s42, s42, s30   ; group16")
        e("s_and_b32 s38, s35, 1   ; c"); e("s_bfe_u32 s39, s35, 0x10001   ; a")
        e("s_lshl_b32 s43, s42, 13"); e("s_lshl_b32 s41, s38, 12"); e("s_add_u32 s43, s43, s41")
        e("s_lshl_b32 s49, s32, 1"); e("s_add_u32 s49, s49, s39"); e("s_lshl_b32 s46, s49, 7"); e("s_add_u32 s46, s46, s43")
        e("s_lshl_b32 s65, s2, 13"); e("s_and_b32 s41, s35, 3"); e("s_lshl_b32 s41, s41, 11"); e("s_add_u32 s65, s65, s41")
        e(f"s_add_u32 s65, s65, {PBASE}   ; outbox"); e("s_xor_b32 s45, s65, 0x2000   ; inbox")
        e("v_lshlrev_b32 v24, 4, v0")
        e("v_lshrrev_b32 v25, 1, v2"); e("v_lshlrev_b32 v25, 2, v25"); e("v_lshl_add_u32 v25, v1, 3, v25")
        e("v_lshrrev_b32 v14, 2, v0   ; rr"); e("v_and_b32 v15, 3, v0   ; c4")
        e(f"v_mul_u32_u24 v11, {HP}, v14"); e("v_lshl_add_u32 v11, v15, 5, v11"); e(f"s_mul_i32 s41, s35, {16*HP}"); e(f"s_add_u32 s41, s41, {HB}"); e("v_add_u32 v11, s41, v11")
        e("v_lshlrev_b32 v12, 5, v15"); e(f"v_add_u32 v12, {SS}, v12")
        e("v_lshlrev_b32 v13, 9, v14"); e("v_lshl_add_u32 v13, v15, 4, v13")
        e("s_lshl_b32 s55, s36, 7"); e("s_lshl_b32 s41, s30, 6"); e("s_add_u32 s55, s55, s41")
        e("s_lshl_b32 s64, s32, 16"); e("s_lshl_b32 s41, s35, 13"); e("s_add_u32 s64, s64, s41"); e("s_add_u32 s64, s64, s55")
        e(f"v_mov_b32 v14, {hex(f2u(C0))}"); e(f"v_mov_b32 v15, {hex(f2u(C0))}"); e(f"s_mov_b32 s28, {hex(f2u(C1))}"); e(f"s_mov_b32 s29, {hex(f2u(C1))}")
    ids()
    e("v_lshrrev_b32 v3, 3, v0  ; r"); e("v_and_b32 v4, 7, v0   ; pos")
    e("v_and_b32 v5, 3, v3"); e("v_lshlrev_b32 v5, 10, v5"); e("v_lshl_add_u32 v5, v4, 4, v5")
    e("v_lshrrev_b32 v6, 5, v0"); e("v_lshl_add_u32 v8, v6, 16, v5"); e("s_lshl_b32 s38, s35, 12"); e("v_add_u32 v8, s38, v8")
    e("s_and_b32 s39, s35, 1"); e("s_lshr_b32 s37, s35, 1"); e("s_lshl_b32 s40, s39, 16"); e("s_lshl_b32 s41, s37, 12"); e("s_add_u32 s40, s40, s41"); e("s_add_u32 s40, s40, 0x10000"); e("v_add_u32 v9, s40, v5")
    e("s_lshl_b32 s40, s39, 2"); e("v_and_b32 v7, 2, v3"); e("v_xor_b32 v7, v7, v4"); e("v_xor_b32 v7, s40, v7"); e("v_lshlrev_b32 v7, 4, v7")
    e("v_lshl_add_u32 v7, v3, 9, v7"); e("v_add_u32 v10, s38, v7   ; w loads")
    e("s_lshl_b32 s44, s30, 16"); e("s_lshl_b32 s41, s36, 7"); e("s_add_u32 s44, s44, s41")
    e("s_lshl_b32 s48, s32, 17"); e("s_lshl_b32 s41, s30, 8"); e("s_add_u32 s48, s48, s41")
    e(f"s_mul_i32 s51, s35, {BP}   ; X m0 base")
    e(f"s_mul_i32 s53, s37, {BP}"); e("s_lshl_b32 s41, s39, 9"); e("s_add_u32 s53, s53, s41")
    e("s_lshl_b32 s54, s35, 10   ; W m0 base")
    if has_u:
        e("s_lshl_b32 s41, s32, 1"); e("s_add_u32 s41, s41, s39"); e("s_lshl_b32 s40, s37, 5"); e("s_add_u32 s41, s41, s40"); e("s_lshl_b32 s41, s41, 9")
        e("v_lshl_add_u32 v17, v4, 18, s41   ; w L2 prefetch")
    e("s_mul_i32 s41, s34, 2048000"); e("s_mov_b32 s22, 2048000"); e("s_mov_b32 s23, 0x20000"); e("s_mov_b32 s26, 1966080"); e("s_mov_b32 s27, 0x20000")
    e("s_waitcnt lgkmcnt(0)")
    e("s_add_u32 s20, s4, s41"); e("s_addc_u32 s21, s5, 0"); e("s_mov_b32 s24, s6"); e("s_mov_b32 s25, s7")
    stamp("l")
    once = []
    def epi_once():
        if not once:
            once.append(1); common_epi_setup()
            for i in range(4, 8): e(f"v_mov_b32 v{i}, -1")
    def issue(it):
        if it[0] == "c": epi_once()
        if it[0] == "w":
            n = it[1]; G, par, c, q = SLAB[n]
            e(f"s_add_u32 m0, s54, {slotaddr(n)}"); e(f"s_add_u32 s40, s44, {(2*q + par)*131072 + (2*G + c)*16384}")
            e(f"buffer_load_dwordx4 v10, s[24:27], s40 offen {ntw} lds")
        elif it[0] == "x":
            qq, i = it[1], it[2]; G, par = qq >> 1, qq & 1
            if i < 4:
                e(f"s_add_u32 m0, s51, {qq*XQ + i*4*BP}"); e(f"s_add_u32 s40, s48, {G*128 + par*512 + i*16384}")
                e(f"buffer_load_dwordx4 v8, s[20:23], s40 offen {ntx} lds")
            else:
                e(f"s_add_u32 m0, s53, {qq*XQ + 16*BP}"); e(f"s_add_u32 s40, s48, {G*128 + par*512}"); e("s_mov_b32 exec_hi, 0")
                e(f"buffer_load_dwordx4 v9, s[20:23], s40 offen {ntx} lds")
                e("s_mov_b32 exec_hi, -1")
        elif it[0] == "u":
            e(f"s_add_u32 s40, s44, {(it[1] >> 1)*32768 + (it[1] & 1)*131072}"); e("s_mov_b64 exec, 0xff")
            e(f"buffer_load_dword v19, v17, s[24:27], s40 offen {ntt}"); e("s_mov_b64 exec, -1")
        elif it[0] == "c":
            if it[1] < 2: e(f"buffer_store_dwordx4 v[4:7], v24, s[60:63], s65 offen offset:{it[1]*1024} sc1")
            else: e("buffer_store_dword v4, v25, s[60:63], s46 offen sc1")
    loader_mark = len(L); e("@@LOADER@@")
    e("s_branch L_service")
    if warm: e(".p2align 12")
    e("L_compute:")
    if warm: e("s_mov_b64 exec, -1")
    if prio: e(f"s_setprio {prio}")
    ids()
    e("s_waitcnt lgkmcnt(0)")
    common_epi_setup()
    e(f"v_mul_u32_u24 v3, {BP}, v1"); e("v_lshl_add_u32 v3, v2, 4, v3"); e("s_lshl_b32 s40, s39, 9"); e("v_add_u32 v16, s40, v3")
    e("s_lshl_b32 s40, s30, 1"); e("s_add_u32 s40, s40, s38")
    e("v_bfe_u32 v3, v0, 3, 2"); e("v_xor_b32 v3, s40, v3"); e("v_lshlrev_b32 v3, 5, v3")
    e("v_lshrrev_b32 v4, 2, v1"); e("v_lshl_add_u32 v4, v2, 3, v4"); e("v_lshl_add_u32 v3, v4, 7, v3"); e("v_and_b32 v4, 3, v0"); e("v_lshl_add_u32 v18, v4, 3, v3")
    e("v_xor_b32 v21, 64, v18")
    e(f"v_add_u32 v19, {RING}, v18"); e(f"v_add_u32 v20, {RING+65536}, v18"); e(f"v_add_u32 v22, {RING}, v21"); e(f"v_add_u32 v23, {RING+65536}, v21")
    e(f"v_mul_u32_u24 v26, {16*HP}, v2"); e("v_lshl_add_u32 v26, v1, 2, v26"); e(f"s_mul_i32 s41, s39, {64*HP}"); e("s_lshl_b32 s40, s38, 6"); e("s_add_u32 s41, s41, s40"); e(f"s_add_u32 s41, s41, {HB}"); e("v_add_u32 v26, s41, v26   ; H write")
    e(f"v_add_u32 v17, {8*HP}, v26"); e(f"v_mov_b32 v27, {MODE}")
    ACC = {"K": 32, "S": 48}
    PR = 64; PU = 72
    POOL0 = 88; NPOOL = 24
    free = list(range(NPOOL)); reg = {}
    lds_at = []; done_upto = [0]; cur_stage = [-1]; bar_done = []; opidx = {}
    def barrier():
        cur_stage[0] += 1; k = cur_stage[0]
        if k == 0: stamp("c")
        bstamp(k)
        e(f"s_barrier   ; stage {k}")
        if k == 0: stamp("c")
        bar_done.append(done_upto[0])
    def emit_read(op, i):
        k, part = op
        nb = 0
        while cur_stage[0] < stage_of(k): barrier(); nb += 1
        if part == 0: reg[k] = POOL0 + 4 * free.pop(0)
        r = reg[k]
        if k[0] == "x":
            _, _, G, par, c, s = k
            e(f"ds_read_b128 v[{r}:{r+3}], v16 offset:{(2*G + par)*XQ + (s >> 2)*BP + (s & 3)*128 + c*64}")
        else:
            _, h, n = k
            sa = slotaddr(n)
            bi, off = (0, sa) if sa < RING else ((1, sa - RING) if sa - RING < 65536 else (2, sa - RING - 65536))
            e(f"ds_read_b64_tr_b16 v[{r+2*part}:{r+2*part+1}], v{(18 if h == 'K' else 21) + bi} offset:{off + 512*part}")
        lds_at.append(i); opidx[k] = len(lds_at)
        return 1 + nb
    fq = []
    for j in range(4):
        a = ACC["S"] + 4 * j
        fq += [(0, ("S", j), f"v_cvt_pk_bf16_f32 v{PU+2*j}, v{a}, v{a+1}"), (0, ("S", j), f"v_cvt_pk_bf16_f32 v{PU+2*j+1}, v{a+2}, v{a+3}"),
               (0, None, f"v_min_u32 v{PU+2*j}, -2, v{PU+2*j}"), (0, None, f"v_min_u32 v{PU+2*j+1}, -2, v{PU+2*j+1}")]
        if j & 1: fq.append((0, None, f"buffer_store_dwordx4 v[{PU+2*j-2}:{PU+2*j+1}], v24, s[60:63], s65 offen offset:{(j >> 1)*1024} sc1"))
    e0_at = rcv - 1 if e0 is None else e0
    rl = [f"buffer_load_dwordx4 v[{PR}:{PR+3}], v24, s[60:63], s45 offen sc1", f"buffer_load_dwordx4 v[{PR+4}:{PR+7}], v24, s[60:63], s45 offen offset:1024 sc1"]
    chk = [f"v_max3_u32 v4, v{PR}, v{PR+1}, v{PR+2}", f"v_max3_u32 v5, v{PR+3}, v{PR+4}, v{PR+5}", f"v_max3_u32 v4, v4, v{PR+6}, v{PR+7}", "v_max_u32 v4, v4, v5", "v_cmp_eq_u32 vcc, -1, v4"]
    fq.append((e0_at, None, "@E0")); fq += [(rcv, None, rl[0]), (rcv + 1, None, rl[1])]
    fq += [(rchk - 2, None, "@MODE"), (rchk - 1, None, "s_cmp_eq_u32 s49, 31")]
    fq += [(rchk, None, "s_waitcnt vmcnt(0)")] + [(rchk, None, c) for c in chk] + [(rchk, None, "s_cbranch_vccnz L_rcvslow\nL_rcvok:")]
    A = ACC["K"]
    PK = lambda b: f"v[{b}:{b+1}]"
    for j in range(4):
        for i in (2 * j, 2 * j + 1):
            fq += [(0, None, f"v_lshlrev_b32 v{PU+2*i}, 16, v{PR+i}"), (0, None, f"v_and_b32 v{PU+2*i+1}, 0xffff0000, v{PR+i}")]
    for j in range(4):
        a = A + 4 * j
        fq += [(0, ("K", j), f"v_pk_add_f32 {PK(a)}, {PK(a)}, {PK(PU+4*j)}"), (0, ("K", j), f"v_pk_add_f32 {PK(a+2)}, {PK(a+2)}, {PK(PU+4*j+2)}")]
        if j == 0: fq += [(0, None, f"v_pk_add_f32 v[28:29], {PK(a)}, {PK(a+2)}"), (0, None, f"v_pk_mul_f32 v[30:31], {PK(a)}, {PK(a)}"), (0, None, f"v_pk_fma_f32 v[30:31], {PK(a+2)}, {PK(a+2)}, v[30:31]")]
        else:
            for b in (a, a + 2): fq += [(0, None, f"v_pk_add_f32 v[28:29], v[28:29], {PK(b)}"), (0, None, f"v_pk_fma_f32 v[30:31], {PK(b)}, {PK(b)}, v[30:31]")]
    lastacc = {}
    for i, m_ in enumerate(mf): lastacc[m_[:2]] = i
    line_of_last = {}
    def states_since(key):
        return sum(1 for s in L[line_of_last[key] + 1:] if not s.endswith(":")) if key in line_of_last else -1
    mode_op = [None]
    def emit_filler(f, i):
        t = f[2]
        if t == "@E0":
            assert cur_stage[0] == len(N) - 1
            assert all(opidx[k] <= done_upto[0] for k in first if k[0] == "w" and 30 <= k[2] < 35)
            e("s_barrier   ; E0"); e("ds_read_b32 v6, v27"); lds_at.append(i); mode_op[0] = len(lds_at)
        elif t == "@MODE":
            assert done_upto[0] >= mode_op[0]
            e("v_readfirstlane_b32 s52, v6")
        else:
            for x in t.split("\n"): e(x)
    started = set(); qi = 0; maxlive = 0; nwaits = 0
    for i, (h, j, xk, wk) in enumerate(mf):
        while qi < len(rq) and first[rq[qi][0]] <= (i + 3 if i == 0 else i):
            emit_read(rq[qi], i - 1); qi += 1
        need = max(opidx[xk], opidx[wk])
        if need > done_upto[0]:
            while need < len(lds_at) and lds_at[need] <= i - wage: need += 1
            n = min(15, len(lds_at) - need)
            e(f"s_waitcnt lgkmcnt({n})"); done_upto[0] = len(lds_at) - n; nwaits += 1
        a = ACC[h] + 4 * j
        c = f"v[{a}:{a+3}]" if (h, j) in started else "0"
        e(f"v_mfma_f32_16x16x32_bf16 v[{a}:{a+3}], v[{reg[xk]}:{reg[xk]+3}], v[{reg[wk]}:{reg[wk]+3}], {c}")
        if lastacc[(h, j)] == i: line_of_last[(h, j)] = len(L) - 1
        started.add((h, j))
        for k in (xk, wk):
            if last[k] == i: free.append((reg[k] - POOL0) // 4)
        nfill = 0
        while qi < len(rq) and free and len(lds_at) - done_upto[0] <= 14 and nfill < 2:
            slack = min(first[rq[qi + d][0]] - D - d for d in range(min(16, len(rq) - qi)))
            if slack <= i - (2 if nfill else 0):
                nfill += emit_read(rq[qi], i); qi += 1
            else: break
        maxlive = max(maxlive, NPOOL - len(free))
        while fq and nfill < 2 + (1 if i > 466 else 0) and fq[0][0] <= i and (fq[0][1] is None or states_since(fq[0][1]) >= 8):
            emit_filler(fq.pop(0), i); nfill += 1
        if mid is True and i in (119, 239, 299, 359, 419): stamp("c")
    stamp("c")
    ntail = len(fq)
    while fq:
        if fq[0][1] is not None and states_since(fq[0][1]) < 8: e(f"s_nop {7 - states_since(fq[0][1])}"); line_of_last[fq[0][1]] = -100
        emit_filler(fq.pop(0), 480)
    e("s_cbranch_scc1 L_mask"); e("L_maskok:")
    e("v_add_f32 v28, v28, v29"); e("v_add_f32 v30, v30, v31"); e("s_cmp_eq_u32 s52, 0"); e("s_nop 0")
    e("v_permlane32_swap_b32 v28, v30"); e("v_add_f32 v28, v28, v30")
    e("v_mov_b32 v29, v28"); e("s_nop 1"); e("v_permlane16_swap_b32 v28, v29"); e("v_add_f32 v28, v28, v29")
    e("v_min_u32 v28, -2, v28")
    e("s_cbranch_scc1 L_pubfar")
    e("buffer_store_dword v28, v25, s[60:63], s46 offen"); e("L_pubok:")
    e("s_barrier   ; E1")
    stamp("c")
    if prio: e("s_setprio 0")
    for r in range(4):
        for j in (0, 2):
            o = ((4 * (r & 1) + j) * HP) // 4
            e(f"ds_write2_b32 v{26 if r < 2 else 17}, v{A+4*j+r}, v{A+4*j+4+r} offset0:{o} offset1:{o + HP//4}")
    e("s_waitcnt lgkmcnt(0)")
    e("L_final:")
    e("s_barrier   ; E1b")
    e("ds_read_b128 v[48:51], v11"); e("ds_read_b128 v[52:55], v11 offset:16")
    e("L_final2:")
    e("s_waitcnt lgkmcnt(0)")
    e("s_barrier   ; E2")
    nstamp["l"] = max(nstamp["l"], 5)
    stamp("b")
    for u in range(2):
        e(f"ds_read_b128 v[{32+u*4}:{35+u*4}], v12 offset:{u*16}"); e(f"ds_read_b128 v[{40+u*4}:{43+u*4}], v12 offset:{128 + u*16}")
    P = lambda b, k: f"v[{b+k}:{b+k+1}]"
    Y = 48; T = 56
    for hh in (0, 4):
        e(f"s_waitcnt lgkmcnt({2 if hh == 0 else 0})")
        ks = (hh, hh + 2)
        for k in ks: e(f"v_pk_fma_f32 {P(Y,k)}, {P(Y,k)}, {P(32,k)}, {P(40,k)}")
        for k in ks: e(f"v_pk_mul_f32 {P(T,k)}, {P(Y,k)}, {P(Y,k)}")
        for k in ks: e(f"v_pk_fma_f32 {P(T,k)}, {P(T,k)}, s[28:29], v[14:15]")
        for k in ks: e(f"v_pk_mul_f32 {P(T,k)}, {P(T,k)}, {P(Y,k)}")
        for k in range(hh, hh + 4): e(f"v_exp_f32 v{T+k}, v{T+k}")
    for hh in (0, 4):
        ks = (hh, hh + 2)
        for k in ks: e(f"v_pk_add_f32 {P(T,k)}, {P(T,k)}, 1.0 op_sel_hi:[1,0]")
        for k in range(hh, hh + 4): e(f"v_rcp_f32 v{T+k}, v{T+k}")
    for k in range(0, 8, 2): e(f"v_pk_mul_f32 {P(T,k)}, {P(T,k)}, {P(Y,k)}")
    for k in range(4): e(f"v_cvt_pk_bf16_f32 v{32+k}, v{T+2*k}, v{T+2*k+1}")
    e("buffer_store_dwordx4 v[32:35], v13, s[56:59], s64 offen")
    if probe is not None:
        stamp("b"); e("s_waitcnt vmcnt(0)"); stamp("b"); e("s_waitcnt lgkmcnt(0)")
        if pcyc: e("s_sub_u32 s70, s74, s72"); e(f"s_lshr_b32 s70, s70, {pmul}")
        else: e("s_sub_u32 s70, s70, s68"); e("s_lshl_b32 s70, s70, 1")
        e("s_min_u32 s70, s70, 20000"); e("s_add_u32 s70, s70, 4000")
        e("L_padt:"); e("s_memrealtime s[72:73]"); e("s_waitcnt lgkmcnt(0)"); e("s_sub_u32 s72, s72, s68"); e("s_cmp_lt_u32 s72, s70"); e("s_cbranch_scc1 L_padt")
    if stamps:
        stamp("b"); e("s_waitcnt vmcnt(0)"); stamp("b")
        if mid == "bar": nstamp["c"] = len(N) + 1; assert len(N) <= 15
        n = nstamp["c"]
        e("s_waitcnt lgkmcnt(0)")
        e("s_lshl_b32 s64, s2, 3"); e("s_add_u32 s64, s64, s35"); e("s_lshl_b32 s64, s64, 7"); e("s_add_u32 s64, s64, 0x1000000")
        e("v_mov_b32 v6, s64")
        for i in range(2 * n): e(f"v_mov_b32 v{64+i}, s{70+i}")
        e("s_mov_b64 exec, 1")
        if mid != "bar": e("v_mov_b32 v8, s67"); e("v_mov_b32 v9, 0"); e("global_store_dwordx2 v6, v[8:9], s[16:17] offset:120")
        for i in range(0, 2 * n, 2): e(f"global_store_dwordx2 v6, v[{64+i}:{65+i}], s[16:17] offset:{i*4}")
    nret = nstamp["c"]
    e("s_endpgm")
    e("L_service:")
    nstamp["l"] = 2
    e("s_lshl_b32 s41, s38, 5"); e("s_add_u32 s40, s55, s41"); e("v_lshl_add_u32 v7, v1, 1, s40")
    e("global_load_ushort v20, v7, s[8:9]"); e("global_load_ushort v21, v7, s[10:11]")
    e("v_lshlrev_b32 v7, 3, v0")
    e("s_lshl_b32 s41, s38, 6"); e(f"s_add_u32 s41, s41, {SS}"); e("v_lshl_add_u32 v22, v1, 2, s41")
    stamp("l")
    e("s_cmp_lg_u32 s35, 3"); e("s_cbranch_scc1 L_flagdone"); e("s_mov_b32 s67, 0x4000")
    e("s_waitcnt lgkmcnt(0)"); e("s_add_u32 s50, s50, s18"); e("s_add_u32 s51, s51, s19")
    e("L_flag:"); e("s_and_b32 s40, s50, s51"); e("s_bitcmp1_b32 s40, 4"); e("s_cbranch_scc1 L_flagok")
    e("s_mov_b64 s[50:51], 0"); e("s_atomic_add_x2 s[50:51], s[14:15], s47 glc"); e("s_sub_u32 s67, s67, 1"); e("s_cmp_lg_u32 s67, 0"); e("s_waitcnt lgkmcnt(0)"); e("s_cbranch_scc1 L_flag")
    e("L_flagok:")
    e("s_cmp_eq_u32 s30, 0"); e("s_cselect_b32 s40, s50, s51"); e("s_or_b32 s41, s18, s19"); e("s_lshl_b32 s41, s41, 4")
    e("s_cmp_eq_u32 s40, s41"); e(f"s_cselect_b32 s40, {1 if fast else 0}, 0")
    e("v_mov_b32 v27, s40"); e(f"v_mov_b32 v26, {MODE}"); e("ds_write_b32 v26, v27"); e("s_waitcnt lgkmcnt(0)")
    e("L_flagdone:")
    e("s_waitcnt vmcnt(0)"); e("v_lshlrev_b32 v20, 16, v20"); e("v_lshlrev_b32 v21, 16, v21")
    e("s_barrier   ; E0")
    e("s_cmp_ge_u32 s35, 2")
    e("s_barrier   ; E1")
    stamp("l")
    e("s_cbranch_scc1 L_final")
    FR = 32
    ld = [f"buffer_load_dwordx2 v[{FR+2*i}:{FR+2*i+1}], v7, s[60:63], s43 offen offset:{i*512} sc1" for i in range(8)]
    for x in ld: e(x)
    e("s_mov_b32 s67, 0x3fff")
    e("s_barrier   ; E1b")
    e("ds_read_b128 v[48:51], v11"); e("ds_read_b128 v[52:55], v11 offset:16")
    e("L_poll:")
    for i in range(4):
        e(f"s_waitcnt vmcnt({6 - 2*i})"); e(f"v_pk_add_f32 {PK(56+2*i)}, {PK(FR+4*i)}, {PK(FR+4*i+2)}")
        if i & 1: e(f"v_pk_add_f32 {PK(56+2*i-2)}, {PK(56+2*i-2)}, {PK(56+2*i)}")
    e("v_pk_add_f32 v[28:29], v[56:57], v[60:61]")
    e("s_nop 0")
    e("v_cmp_u_f32 vcc, v28, v29"); e("s_cbranch_vccnz L_pollchk")
    e("L_pollok:")
    stamp("l")
    e("v_permlane32_swap_b32 v28, v29"); e("v_add_f32 v28, v28, v29")
    e(f"v_mul_f32 v28, {hex(f2u(1.0/1993))}, v28")
    e("v_mov_b32 v29, v28"); e("s_nop 1"); e("v_permlane16_swap_b32 v28, v29"); e("v_add_f32 v28, v28, v29")
    e("v_mov_b32 v29, v28"); e("s_nop 1"); e("v_permlane32_swap_b32 v28, v29   ; v28 = mean, v29 = E[h^2]")
    e("v_fma_f32 v29, -v28, v28, v29"); e("v_max_f32 v29, 0, v29"); e(f"v_add_f32 v29, {hex(f2u(1e-5))}, v29"); e("v_rsq_f32 v29, v29")
    e("s_nop 0")
    e("v_mul_f32 v30, v29, v20   ; scale"); e("v_fma_f32 v31, -v28, v30, v21  ; shift")
    e("ds_write2_b32 v22, v30, v31 offset0:0 offset1:32")
    e("s_branch L_final2")
    e("L_pollchk:")
    e(f"v_max3_u32 v4, v{FR}, v{FR+1}, v{FR+2}"); e(f"v_max3_u32 v5, v{FR+3}, v{FR+4}, v{FR+5}")
    for i in range(6, 14, 4):
        e(f"v_max3_u32 v4, v4, v{FR+i}, v{FR+i+1}"); e(f"v_max3_u32 v5, v5, v{FR+i+2}, v{FR+i+3}")
    e(f"v_max3_u32 v4, v4, v{FR+14}, v{FR+15}"); e("v_max_u32 v4, v4, v5")
    e("v_cmp_eq_u32 vcc, -1, v4"); e("s_cbranch_vccz L_pollok")
    e("s_sub_u32 s67, s67, 1"); e("s_cbranch_scc1 L_pollok")
    for x in ld: e(x)
    e("s_branch L_poll")
    e("L_rcvslow:"); e("s_mov_b32 s67, 0x4000")
    e("L_rcvloop:")
    for i in rl: e(i)
    e("s_sub_u32 s67, s67, 1"); e("s_waitcnt vmcnt(0)"); e("s_cbranch_scc1 L_rcvend")
    for i in chk: e(i)
    e("s_cbranch_vccnz L_rcvloop")
    e("L_rcvend:"); e("s_cmp_eq_u32 s49, 31"); e("s_branch L_rcvok")
    e("L_pubfar:"); e("buffer_store_dword v28, v25, s[60:63], s46 offen sc1"); e("s_branch L_pubok")
    e("L_mask:   ; last tile: only rows 0..8 exist (lanes with g = 0)")
    e(f"v_pk_add_f32 v[28:29], {PK(A)}, {PK(A+4)}"); e(f"v_pk_mul_f32 v[30:31], {PK(A)}, {PK(A)}"); e(f"v_pk_fma_f32 v[30:31], {PK(A+4)}, {PK(A+4)}, v[30:31]")
    for b in (A + 8, A + 12): e(f"v_pk_add_f32 v[28:29], v[28:29], {PK(b)}"); e(f"v_pk_fma_f32 v[30:31], {PK(b)}, {PK(b)}, v[30:31]")
    e(f"v_add_f32 v28, v28, v{A+2}"); e(f"v_fma_f32 v30, v{A+2}, v{A+2}, v30")
    e("v_cmp_eq_u32 vcc, 0, v2"); e("s_nop 1")
    for r in range(28, 32): e(f"v_cndmask_b32 v{r}, 0, v{r}, vcc")
    e("s_branch L_maskok")
    tailL = L[loader_mark + 1:]; del L[loader_mark:]
    def free_after(it):
        if it[0] != "w" or it[1] < NSLOT: return -1
        n = it[1]
        if n < 51: keys = [k for k in opidx if k[0] == "w" and k[2] == n - NSLOT]
        else: keys = [k for k in opidx if k[0] == "x" and k[2] == 0]
        m_ = max(opidx[k] for k in keys)
        for b, d in enumerate(bar_done):
            if d >= m_: return b
        raise Exception(f"slot for {it} never freed")
    I = 0; plan = []
    for k, n in enumerate(N):
        ld_ = lead[min(k, len(lead) - 1)] if isinstance(lead, (list, tuple)) else lead
        tgt = min(len(items), n + ld_)
        while I < tgt and free_after(items[I]) < k:
            issue(items[I]); I += 1
            if I == 9: epi_once()
        assert I >= n, (k, I, n)
        plan.append((k, n, I))
        e(f"s_waitcnt vmcnt({I - n})")
        bstamp(k)
        e(f"s_barrier   ; stage {k}")
        if k == flag_bar:
            e("s_cmp_lg_u32 s35, 3"); e("s_cbranch_scc1 L_noflag")
            e("s_getreg_b32 s40, hwreg(HW_REG_XCC_ID, 0, 4)"); e("s_mul_i32 s41, s40, s40"); e("s_lshl_b32 s41, s41, 13"); e("s_lshl_b32 s40, s40, 5"); e("s_add_u32 s40, s40, s41"); e("s_add_u32 s40, s40, 1")
            e("s_cmp_eq_u32 s30, 0"); e("s_cselect_b32 s18, s40, 0"); e("s_cselect_b32 s19, 0, s40"); e("s_mov_b64 s[4:5], s[18:19]")
            e("s_atomic_add_x2 s[4:5], s[14:15], s47 glc"); e("L_noflag:")
    e(f"; plan {plan} maxlive {maxlive} waits {nwaits} flagbar {flag_bar} tail {ntail}")
    L += [t.replace("s_add_u32 s50, s50, s18", "s_add_u32 s50, s4, s18").replace("s_add_u32 s51, s51, s19", "s_add_u32 s51, s5, s19") for t in tailL]
    e('.section .rodata,"a"'); e(".p2align 6"); e(f".amdhsa_kernel {KN}")
    e(f"  .amdhsa_next_free_vgpr {POOL0 + 4*NPOOL}"); e("  .amdhsa_next_free_sgpr 102"); e(f"  .amdhsa_accum_offset {POOL0 + 4*NPOOL}")
    e("  .amdhsa_group_segment_fixed_size 0"); e("  .amdhsa_kernarg_size 56"); e("  .amdhsa_user_sgpr_count 2")
    e("  .amdhsa_user_sgpr_kernarg_segment_ptr 1"); e("  .amdhsa_system_sgpr_workgroup_id_x 1")
    e("  .amdhsa_float_denorm_mode_32 3")
    e(".end_amdhsa_kernel")
    return "\n".join(L) + "\n", nret
if __name__ == "__main__":
    kw = eval("dict(" + (sys.argv[1] if len(sys.argv) > 1 else "") + ")")
    sys.stdout.write(gen(**kw)[0])
```

```python
import sys, math, struct, subprocess, os, tempfile
KN = "standalone__self_sup_conv_stem_wavlm__speech_kernel"
NWAVES = 8
HEADER = """; WavLM conv stem: strided conv (implicit GEMM) + GroupNorm over time + GELU(tanh), one launch.
;   32 out(2,1993,256)bf16  40 debug(256 B, zero at entry)  48 ws"""
def f2u(x): return struct.unpack("<I", struct.pack("<f", x))[0]

BP = 1056; XQ = 18 * BP; RING = 4 * XQ; NSLOT = 21
def slotaddr(n):
    return RING + (n % NSLOT) * 4096 if n < 51 else (n - 51) * 4096
SLAB = [(G, par, c, q) for G in range(2) for par in range(2) for c in range(2) for q in range(8 - par)]
HB = RING + 9 * 4096; HP = 144; SS = HB + 128 * HP
PBASE = 0x40000
MODE = RING + NSLOT * 4096
CBASE = 0x20000; CSTR = 4352
C0 = -2.0 * math.sqrt(2.0 / math.pi) * math.log2(math.e); C1 = C0 * 0.044715

DEF_STREAM = "x0 w0 u0 w1-15 u1 x1 c g w16-29 u2 x2 w30-45 u3 x3 w46-59"
DEF_STG = [1, 2, 3, 5, 9, 16, 19, 24, 30, 33, 38, 46, 50, 55, 60]

def addr_of_lines(src):
    d = tempfile.mkdtemp()
    open(d + "/a.s", "w").write(src)
    subprocess.run(["clang", "-x", "assembler", "-target", "amdgcn-amd-amdhsa", "-mcpu=gfx950", "-c", d + "/a.s", "-o", d + "/a.o"], check=True)
    out = subprocess.run(["llvm-objdump", "-d", "--mcpu=gfx950", d + "/a.o"], capture_output=True, text=True).stdout
    res = []; on = False
    for ln in out.splitlines():
        if "<L_compute>:" in ln: on = True; base = int(ln.split()[0], 16)
        elif on and "//" in ln: res.append(int(ln.split("//")[1].split(":")[0], 16) - base)
    return res

def gen(warm=True, **kw):
    src, n = gen1(pads=None, warm=warm, **kw)
    if not warm: return src, n
    lines = src.split("\n")
    i0 = lines.index("L_compute:")
    isins = lambda s: s and not s.startswith((";", ".", " .")) and not s.endswith(":") and not s.startswith("  .")
    idx = [i for i in range(i0, len(lines)) if isins(lines[i])]
    ad = addr_of_lines(src.replace("L_pad1", "L_compute").replace("L_pad2", "L_compute"))
    extra = 0
    ins = []
    for p in (1, 2):
        k = next(k for k, a in enumerate(ad) if a + extra >= 4096 * p)
        ins.append((idx[k], p)); extra += 4
    for i, p in reversed(ins):
        lines[i:i] = [f"L_pad{p}:", "s_cbranch_execz L_compute"]
    return "\n".join(lines), n

def gen1(pads, warm, stamps=False, D=8, gs=1, lag=22, stream=DEF_STREAM, stg=None, lead=11, ntx="", ntw="", ntt="",
         rcv=436, rchk=462, prio=1, probe=None, pcyc=False, mid=False, wage=5, e0=None, fast=True, gl=4, pmul=3, glS=3, fb=None, noclear=False):
    L = []; e = L.append
    e(HEADER)
    e("; @launch grid=(256,1,1) block=(512,1,1) lds=163840")
    e('.amdgcn_target "amdgcn-amd-amdhsa--gfx950"')
    e(".text"); e(f".globl {KN}"); e(".p2align 8"); e(f".type {KN},@function"); e(f"{KN}:")
    nstamp = {"l": 0, "c": 0}
    clk = 's_memrealtime' if stamps == 'rt' else 's_memtime'
    def bstamp(k):
        if mid == "bar": e(f"{clk} s[{72+2*k}:{73+2*k}]")
    def stamp(role):
        if mid == "bar" and (nstamp["c"] or nstamp["l"]): return
        if role == "b":
            n = max(nstamp.values()); nstamp["l"] = nstamp["c"] = n + 1
        else:
            n = nstamp[role]; nstamp[role] += 1
        if stamps: e(f"{clk} s[{70+2*n}:{71+2*n}]")
        if probe is not None:
            if n == 0: e("s_memrealtime s[68:69]"); e("s_memtime s[72:73]"); e("s_memrealtime s[70:71]"); e("s_memtime s[74:75]")
            elif (role, n) == probe or (role == "b" and n == probe[1]): e("s_memrealtime s[70:71]"); e("s_memtime s[74:75]")
    items = []
    for tok in stream.split():
        k = tok[0]
        if k == "x":
            if "." in tok: qq, i = tok[1:].split("."); items.append(("x", int(qq), int(i)))
            else: items += [("x", int(tok[1:]), i) for i in range(5)]
        elif k == "w":
            a, _, b = tok[1:].partition("-"); items += [("w", n) for n in range(int(a), int(b or a) + 1)]
        elif k == "u": items.append((k, int(tok[1:])))
        elif k == "g": items += [("g", 0), ("g", 1)]
        elif k == "c": items += [("c", int(tok[1:]))] if tok[1:] else [("c", 0), ("c", 1), ("c", 2)]
    pos = {it: i for i, it in enumerate(items)}
    assert all(("w", n) in pos for n in range(60)) and all(("x", q, i) in pos for q in range(4) for i in range(5)) and all(("c", i) in pos for i in range(3))
    has_u = any(it[0] == "u" for it in items)
    nf = 60 - lag
    mf = []
    for kind, rng in (("F", range(0, nf)), ("S", range(nf, 60)), ("K", range(nf, 60))):
        halves = ["S", "K"] if kind == "F" else [kind]
        groups = []
        for n in rng:
            g_ = gs if isinstance(gs, int) else gs[kind]
            if n < 8: g_ = 1
            if groups and SLAB[groups[-1][0]][:3] == SLAB[n][:3] and len(groups[-1]) < g_: groups[-1].append(n)
            else: groups.append([n])
        gl_ = {"S": glS, "K": gl, "F": 1}[kind]
        if gl_ > 1:
            tailn = list(rng)[-gl_:]
            groups = [[n for n in g if n not in tailn] for g in groups]; groups = [g for g in groups if g] + [tailn]
        xp = "K" if kind == "K" else "A"
        for grp in groups:
            xkey = lambda n, j: ("x", xp, SLAB[n][0], SLAB[n][1], SLAB[n][2], SLAB[n][3] + j)
            if len(grp) == 1:
                for h in halves:
                    for j in range(4): mf.append((h, j, xkey(grp[0], j), ("w", h, grp[0])))
            else:
                for j in range(4):
                    for h in halves:
                        for n in grp: mf.append((h, j, xkey(n, j), ("w", h, n)))
    assert len(mf) == 480
    first = {}; last = {}
    for i, (h, j, xk, wk) in enumerate(mf):
        for k in (wk, xk):
            first.setdefault(k, i); last[k] = i
    rq = []
    for k in sorted(first, key=lambda k: (first[k], k[0] == "x")):
        rq += [(k, 0)] if k[0] == "x" else [(k, 0), (k, 1)]
    def need_item(k):
        if k[0] == "w": return pos[("w", k[2])]
        return max(pos[("x", k[2] * 2 + k[3], i)] for i in range(5))
    if stg is None: stg = DEF_STG
    N = []
    for s in stg:
        n = max(pos[("w", i)] for i in range(s)) + 1
        G, par = SLAB[s - 1][:2]
        n = max(n, max(pos[("x", qq, i)] for qq in range(G * 2 + par + 1) for i in range(5)) + 1)
        N.append(n)
    N[-1] = len(items)
    def stage_of(k):
        ni = need_item(k)
        for s, n in enumerate(N):
            if ni < n: return s
    flag_bar = min(s for s, n in enumerate(N) if max(pos[("c", i)] for i in range(3)) < n)
    if fb is not None:
        assert fb >= flag_bar or noclear
        flag_bar = fb
    stamp("b")
    e("s_load_dwordx4 s[4:7], s[0:1], 0")
    if stamps: e("s_mov_b32 s67, 0x4000")
    e("s_cmp_ge_u32 s2, 256"); e("s_cbranch_scc1 L_exit")
    e("v_readfirstlane_b32 s35, v0")
    e("s_load_dwordx8 s[8:15], s[0:1], 16"); e("s_load_dwordx2 s[16:17], s[0:1], 48")
    e("v_and_b32 v0, 63, v0"); e("s_lshr_b32 s35, s35, 6   ; wave")
    e("s_cmp_lt_u32 s35, 4"); e("s_cbranch_scc1 L_loader")
    if warm:
        e("s_mov_b64 exec, 0")
        e("s_cmp_eq_u32 s35, 5"); e("s_cbranch_scc1 L_pad1"); e("s_cmp_eq_u32 s35, 6"); e("s_cbranch_scc1 L_pad2")
    e("s_branch L_compute")
    e("L_exit:"); e("s_endpgm")
    e("L_loader:")
    def ids():
        e("s_and_b32 s30, s2, 1   ; kh"); e("s_bfe_u32 s34, s2, 0x10001   ; b"); e("s_bfe_u32 s31, s2, 0x10002"); e("s_xor_b32 s31, s31, s34  ; nth")
        e("s_bfe_u32 s32, s2, 0x40003   ; mt"); e("s_lshr_b32 s33, s2, 7   ; ntl"); e("s_lshl_b32 s36, s31, 1"); e("s_add_u32 s36, s36, s33   ; nt")
    def common_epi_setup():
        e("v_and_b32 v1, 15, v0   ; n"); e("v_lshrrev_b32 v2, 4, v0   ; g")
        e("s_mul_i32 s41, s34, 1020416"); e("s_add_u32 s56, s12, s41"); e("s_addc_u32 s57, s13, 0"); e("s_mov_b32 s58, 1020416"); e("s_mov_b32 s59, 0x20000")
        e("s_mov_b32 s60, s16"); e("s_mov_b32 s61, s17"); e(f"s_mov_b32 s62, {PBASE + 256*8192}"); e("s_mov_b32 s63, 0x20000")
        e("s_lshl_b32 s42, s34, 2"); e("s_add_u32 s42, s42, s36"); e("s_lshl_b32 s33, s42, 2"); e(f"s_mul_i32 s47, s42, {CSTR}"); e(f"s_add_u32 s47, s47, {CBASE}"); e("s_lshl_b32 s42, s42, 1"); e("s_add_u32 s42, s42, s30   ; group16")
        e("s_and_b32 s38, s35, 1   ; c"); e("s_bfe_u32 s39, s35, 0x10001   ; a")
        e("s_lshl_b32 s43, s42, 13"); e("s_lshl_b32 s41, s38, 12"); e("s_add_u32 s43, s43, s41")
        e("s_lshl_b32 s49, s32, 1"); e("s_add_u32 s49, s49, s39"); e("s_lshl_b32 s46, s49, 7"); e("s_add_u32 s46, s46, s43")
        e("s_lshl_b32 s65, s2, 13"); e("s_and_b32 s41, s35, 3"); e("s_lshl_b32 s41, s41, 11"); e("s_add_u32 s65, s65, s41")
        e(f"s_add_u32 s65, s65, {PBASE}   ; outbox"); e("s_xor_b32 s45, s65, 0x2000   ; inbox")
        e("v_lshlrev_b32 v24, 4, v0")
        e("v_lshrrev_b32 v25, 1, v2"); e("v_lshlrev_b32 v25, 2, v25"); e("v_lshl_add_u32 v25, v1, 3, v25")
        e("v_lshrrev_b32 v14, 2, v0   ; rr"); e("v_and_b32 v15, 3, v0   ; c4")
        e(f"v_mul_u32_u24 v11, {HP}, v14"); e("v_lshl_add_u32 v11, v15, 5, v11"); e(f"s_mul_i32 s41, s35, {16*HP}"); e(f"s_add_u32 s41, s41, {HB}"); e("v_add_u32 v11, s41, v11")
        e("v_lshlrev_b32 v12, 5, v15"); e(f"v_add_u32 v12, {SS}, v12")
        e("v_lshlrev_b32 v13, 9, v14"); e("v_lshl_add_u32 v13, v15, 4, v13")
        e("s_lshl_b32 s55, s36, 7"); e("s_lshl_b32 s41, s30, 6"); e("s_add_u32 s55, s55, s41")
        e("s_lshl_b32 s64, s32, 16"); e("s_lshl_b32 s41, s35, 13"); e("s_add_u32 s64, s64, s41"); e("s_add_u32 s64, s64, s55")
        e(f"v_mov_b32 v14, {hex(f2u(C0))}"); e(f"v_mov_b32 v15, {hex(f2u(C0))}"); e(f"s_mov_b32 s28, {hex(f2u(C1))}"); e(f"s_mov_b32 s29, {hex(f2u(C1))}")
    ids()
    e("v_lshrrev_b32 v3, 3, v0  ; r"); e("v_and_b32 v4, 7, v0   ; pos")
    e("v_and_b32 v5, 3, v3"); e("v_lshlrev_b32 v5, 10, v5"); e("v_lshl_add_u32 v5, v4, 4, v5")
    e("v_lshrrev_b32 v6, 5, v0"); e("v_lshl_add_u32 v8, v6, 16, v5"); e("s_lshl_b32 s38, s35, 12"); e("v_add_u32 v8, s38, v8")
    e("s_and_b32 s39, s35, 1"); e("s_lshr_b32 s37, s35, 1"); e("s_lshl_b32 s40, s39, 16"); e("s_lshl_b32 s41, s37, 12"); e("s_add_u32 s40, s40, s41"); e("s_add_u32 s40, s40, 0x10000"); e("v_add_u32 v9, s40, v5")
    e("s_lshl_b32 s40, s39, 2"); e("v_and_b32 v7, 2, v3"); e("v_xor_b32 v7, v7, v4"); e("v_xor_b32 v7, s40, v7"); e("v_lshlrev_b32 v7, 4, v7")
    e("v_lshl_add_u32 v7, v3, 9, v7"); e("v_add_u32 v10, s38, v7   ; w loads")
    e("s_lshl_b32 s44, s30, 16"); e("s_lshl_b32 s41, s36, 7"); e("s_add_u32 s44, s44, s41")
    e("s_lshl_b32 s48, s32, 17"); e("s_lshl_b32 s41, s30, 8"); e("s_add_u32 s48, s48, s41")
    e(f"s_mul_i32 s51, s35, {BP}   ; X m0 base")
    e(f"s_mul_i32 s53, s37, {BP}"); e("s_lshl_b32 s41, s39, 9"); e("s_add_u32 s53, s53, s41")
    e("s_lshl_b32 s54, s35, 10   ; W m0 base")
    if has_u:
        e("s_lshl_b32 s41, s32, 1"); e("s_add_u32 s41, s41, s39"); e("s_lshl_b32 s40, s37, 5"); e("s_add_u32 s41, s41, s40"); e("s_lshl_b32 s41, s41, 9")
        e("v_lshl_add_u32 v17, v4, 18, s41   ; w L2 prefetch")
    e("s_mul_i32 s41, s34, 2048000"); e("s_mov_b32 s22, 2048000"); e("s_mov_b32 s23, 0x20000"); e("s_mov_b32 s26, 1966080"); e("s_mov_b32 s27, 0x20000")
    e("s_waitcnt lgkmcnt(0)")
    e("s_add_u32 s20, s4, s41"); e("s_addc_u32 s21, s5, 0"); e("s_mov_b32 s24, s6"); e("s_mov_b32 s25, s7")
    stamp("l")
    once = []
    def epi_once():
        if not once:
            once.append(1); common_epi_setup()
            for i in range(4, 8): e(f"v_mov_b32 v{i}, -1")
            e("s_lshl_b32 s41, s38, 5"); e("s_add_u32 s41, s55, s41"); e("v_lshl_add_u32 v23, v1, 1, s41")
            e("s_or_b32 s31, s32, s30"); e("s_xor_b32 s41, s35, 3"); e("s_or_b32 s31, s31, s41"); e("s_cbranch_scc1 L_noroot")
            e("s_mov_b64 s[4:5], 0"); e("s_atomic_swap_x2 s[4:5], s[16:17], s47 glc"); e("L_noroot:")
    def issue(it):
        if it[0] in "cg": epi_once()
        if it[0] == "g": e(f"global_load_ushort v{20 + it[1]}, v23, s[{8 + 2*it[1]}:{9 + 2*it[1]}]")
        if it[0] == "w":
            n = it[1]; G, par, c, q = SLAB[n]
            e(f"s_add_u32 m0, s54, {slotaddr(n)}"); e(f"s_add_u32 s40, s44, {(2*q + par)*131072 + (2*G + c)*16384}")
            e(f"buffer_load_dwordx4 v10, s[24:27], s40 offen {ntw} lds")
        elif it[0] == "x":
            qq, i = it[1], it[2]; G, par = qq >> 1, qq & 1
            if i < 4:
                e(f"s_add_u32 m0, s51, {qq*XQ + i*4*BP}"); e(f"s_add_u32 s40, s48, {G*128 + par*512 + i*16384}")
                e(f"buffer_load_dwordx4 v8, s[20:23], s40 offen {ntx} lds")
            else:
                e(f"s_add_u32 m0, s53, {qq*XQ + 16*BP}"); e(f"s_add_u32 s40, s48, {G*128 + par*512}"); e("s_mov_b32 exec_hi, 0")
                e(f"buffer_load_dwordx4 v9, s[20:23], s40 offen {ntx} lds")
                e("s_mov_b32 exec_hi, -1")
        elif it[0] == "u":
            e(f"s_add_u32 s40, s44, {(it[1] >> 1)*32768 + (it[1] & 1)*131072}"); e("s_mov_b64 exec, 0xff")
            e(f"buffer_load_dword v19, v17, s[24:27], s40 offen {ntt}"); e("s_mov_b64 exec, -1")
        elif it[0] == "c":
            if it[1] < 2: e(f"buffer_store_dwordx4 v[4:7], v24, s[60:63], s65 offen offset:{it[1]*1024} sc1")
            else: e("buffer_store_dword v4, v25, s[60:63], s46 offen sc1")
    loader_mark = len(L); e("@@LOADER@@")
    e("s_branch L_service")
    if warm: e(".p2align 12")
    e("L_compute:")
    if warm: e("s_mov_b64 exec, -1")
    if prio: e(f"s_setprio {prio}")
    ids()
    e("s_waitcnt lgkmcnt(0)")
    common_epi_setup()
    e(f"v_mul_u32_u24 v3, {BP}, v1"); e("v_lshl_add_u32 v3, v2, 4, v3"); e("s_lshl_b32 s40, s39, 9"); e("v_add_u32 v16, s40, v3")
    e("s_lshl_b32 s40, s30, 1"); e("s_add_u32 s40, s40, s38")
    e("v_bfe_u32 v3, v0, 3, 2"); e("v_xor_b32 v3, s40, v3"); e("v_lshlrev_b32 v3, 5, v3")
    e("v_lshrrev_b32 v4, 2, v1"); e("v_lshl_add_u32 v4, v2, 3, v4"); e("v_lshl_add_u32 v3, v4, 7, v3"); e("v_and_b32 v4, 3, v0"); e("v_lshl_add_u32 v18, v4, 3, v3")
    e("v_xor_b32 v21, 64, v18")
    e(f"v_add_u32 v19, {RING}, v18"); e(f"v_add_u32 v20, {RING+65536}, v18"); e(f"v_add_u32 v22, {RING}, v21"); e(f"v_add_u32 v23, {RING+65536}, v21")
    e(f"v_mul_u32_u24 v26, {16*HP}, v2"); e("v_lshl_add_u32 v26, v1, 2, v26"); e(f"s_mul_i32 s41, s39, {64*HP}"); e("s_lshl_b32 s40, s38, 6"); e("s_add_u32 s41, s41, s40"); e(f"s_add_u32 s41, s41, {HB}"); e("v_add_u32 v26, s41, v26   ; H write")
    e(f"v_add_u32 v17, {8*HP}, v26"); e(f"v_mov_b32 v27, {MODE}")
    ACC = {"K": 32, "S": 48}
    PR = 64; PU = 72
    POOL0 = 88; NPOOL = 24
    free = list(range(NPOOL)); reg = {}
    lds_at = []; done_upto = [0]; cur_stage = [-1]; bar_done = []; opidx = {}
    def barrier():
        cur_stage[0] += 1; k = cur_stage[0]
        if k == 0: stamp("c")
        bstamp(k)
        e(f"s_barrier   ; stage {k}")
        if k == 0: stamp("c")
        bar_done.append(done_upto[0])
    def emit_read(op, i):
        k, part = op
        nb = 0
        while cur_stage[0] < stage_of(k): barrier(); nb += 1
        if part == 0: reg[k] = POOL0 + 4 * free.pop(0)
        r = reg[k]
        if k[0] == "x":
            _, _, G, par, c, s = k
            e(f"ds_read_b128 v[{r}:{r+3}], v16 offset:{(2*G + par)*XQ + (s >> 2)*BP + (s & 3)*128 + c*64}")
        else:
            _, h, n = k
            sa = slotaddr(n)
            bi, off = (0, sa) if sa < RING else ((1, sa - RING) if sa - RING < 65536 else (2, sa - RING - 65536))
            e(f"ds_read_b64_tr_b16 v[{r+2*part}:{r+2*part+1}], v{(18 if h == 'K' else 21) + bi} offset:{off + 512*part}")
        lds_at.append(i); opidx[k] = len(lds_at)
        return 1 + nb
    fq = []
    for j in range(4):
        a = ACC["S"] + 4 * j
        fq += [(0, ("S", j), f"v_cvt_pk_bf16_f32 v{PU+2*j}, v{a}, v{a+1}"), (0, ("S", j), f"v_cvt_pk_bf16_f32 v{PU+2*j+1}, v{a+2}, v{a+3}"),
               (0, None, f"v_min_u32 v{PU+2*j}, -2, v{PU+2*j}"), (0, None, f"v_min_u32 v{PU+2*j+1}, -2, v{PU+2*j+1}")]
        if j & 1: fq.append((0, None, f"buffer_store_dwordx4 v[{PU+2*j-2}:{PU+2*j+1}], v24, s[60:63], s65 offen offset:{(j >> 1)*1024} sc1"))
    e0_at = rcv - 1 if e0 is None else e0
    rl = [f"buffer_load_dwordx4 v[{PR}:{PR+3}], v24, s[60:63], s45 offen sc1", f"buffer_load_dwordx4 v[{PR+4}:{PR+7}], v24, s[60:63], s45 offen offset:1024 sc1"]
    chk = [f"v_max3_u32 v4, v{PR}, v{PR+1}, v{PR+2}", f"v_max3_u32 v5, v{PR+3}, v{PR+4}, v{PR+5}", f"v_max3_u32 v4, v4, v{PR+6}, v{PR+7}", "v_max_u32 v4, v4, v5", "v_cmp_eq_u32 vcc, -1, v4"]
    fq.append((e0_at, None, "@E0")); fq += [(rcv, None, rl[0]), (rcv + 1, None, rl[1])]
    fq += [(rchk - 2, None, "@MODE"), (rchk - 1, None, "s_cmp_eq_u32 s49, 31")]
    fq += [(rchk, None, "s_waitcnt vmcnt(0)")] + [(rchk, None, c) for c in chk] + [(rchk, None, "s_cbranch_vccnz L_rcvslow\nL_rcvok:")]
    A = ACC["K"]
    PK = lambda b: f"v[{b}:{b+1}]"
    for j in range(4):
        for i in (2 * j, 2 * j + 1):
            fq += [(0, None, f"v_lshlrev_b32 v{PU+2*i}, 16, v{PR+i}"), (0, None, f"v_and_b32 v{PU+2*i+1}, 0xffff0000, v{PR+i}")]
    for j in range(4):
        a = A + 4 * j
        fq += [(0, ("K", j), f"v_pk_add_f32 {PK(a)}, {PK(a)}, {PK(PU+4*j)}"), (0, ("K", j), f"v_pk_add_f32 {PK(a+2)}, {PK(a+2)}, {PK(PU+4*j+2)}")]
        if j == 0: fq += [(0, None, f"v_pk_add_f32 v[28:29], {PK(a)}, {PK(a+2)}"), (0, None, f"v_pk_mul_f32 v[30:31], {PK(a)}, {PK(a)}"), (0, None, f"v_pk_fma_f32 v[30:31], {PK(a+2)}, {PK(a+2)}, v[30:31]")]
        else:
            for b in (a, a + 2): fq += [(0, None, f"v_pk_add_f32 v[28:29], v[28:29], {PK(b)}"), (0, None, f"v_pk_fma_f32 v[30:31], {PK(b)}, {PK(b)}, v[30:31]")]
    lastacc = {}
    for i, m_ in enumerate(mf): lastacc[m_[:2]] = i
    line_of_last = {}
    def states_since(key):
        return sum(1 for s in L[line_of_last[key] + 1:] if not s.endswith(":")) if key in line_of_last else -1
    mode_op = [None]
    def emit_filler(f, i):
        t = f[2]
        if t == "@E0":
            assert cur_stage[0] == len(N) - 1
            assert all(opidx[k] <= done_upto[0] for k in first if k[0] == "w" and 30 <= k[2] < 35)
            e("s_barrier   ; E0"); e("ds_read_b32 v6, v27"); lds_at.append(i); mode_op[0] = len(lds_at)
        elif t == "@MODE":
            assert done_upto[0] >= mode_op[0]
            e("v_readfirstlane_b32 s52, v6")
        else:
            for x in t.split("\n"): e(x)
    started = set(); qi = 0; maxlive = 0; nwaits = 0
    for i, (h, j, xk, wk) in enumerate(mf):
        while qi < len(rq) and first[rq[qi][0]] <= (i + 3 if i == 0 else i):
            emit_read(rq[qi], i - 1); qi += 1
        need = max(opidx[xk], opidx[wk])
        if need > done_upto[0]:
            while need < len(lds_at) and lds_at[need] <= i - wage: need += 1
            n = min(15, len(lds_at) - need)
            e(f"s_waitcnt lgkmcnt({n})"); done_upto[0] = len(lds_at) - n; nwaits += 1
        a = ACC[h] + 4 * j
        c = f"v[{a}:{a+3}]" if (h, j) in started else "0"
        e(f"v_mfma_f32_16x16x32_bf16 v[{a}:{a+3}], v[{reg[xk]}:{reg[xk]+3}], v[{reg[wk]}:{reg[wk]+3}], {c}")
        if lastacc[(h, j)] == i: line_of_last[(h, j)] = len(L) - 1
        started.add((h, j))
        for k in (xk, wk):
            if last[k] == i: free.append((reg[k] - POOL0) // 4)
        nfill = 0
        while qi < len(rq) and free and len(lds_at) - done_upto[0] <= 14 and nfill < 2:
            slack = min(first[rq[qi + d][0]] - D - d for d in range(min(16, len(rq) - qi)))
            if slack <= i - (2 if nfill else 0):
                nfill += emit_read(rq[qi], i); qi += 1
            else: break
        maxlive = max(maxlive, NPOOL - len(free))
        while fq and nfill < 2 + (1 if i > 466 else 0) and fq[0][0] <= i and (fq[0][1] is None or states_since(fq[0][1]) >= 8):
            emit_filler(fq.pop(0), i); nfill += 1
        if mid is True and i in (119, 239, 299, 359, 419): stamp("c")
    stamp("c")
    ntail = len(fq)
    while fq:
        if fq[0][1] is not None and states_since(fq[0][1]) < 8: e(f"s_nop {7 - states_since(fq[0][1])}"); line_of_last[fq[0][1]] = -100
        emit_filler(fq.pop(0), 480)
    e("s_cbranch_scc1 L_mask"); e("L_maskok:")
    e("v_add_f32 v28, v28, v29"); e("v_add_f32 v30, v30, v31"); e("s_cmp_eq_u32 s52, 0"); e("s_nop 0")
    e("v_permlane32_swap_b32 v28, v30"); e("v_add_f32 v28, v28, v30")
    e("v_mov_b32 v29, v28"); e("s_nop 1"); e("v_permlane16_swap_b32 v28, v29"); e("v_add_f32 v28, v28, v29")
    e("v_min_u32 v28, -2, v28")
    e("s_cbranch_scc1 L_pubfar")
    e("buffer_store_dword v28, v25, s[60:63], s46 offen"); e("L_pubok:")
    e("s_barrier   ; E1")
    stamp("c")
    if prio: e("s_setprio 0")
    for r in range(4):
        for j in (0, 2):
            o = ((4 * (r & 1) + j) * HP) // 4
            e(f"ds_write2_b32 v{26 if r < 2 else 17}, v{A+4*j+r}, v{A+4*j+4+r} offset0:{o} offset1:{o + HP//4}")
    e("s_waitcnt lgkmcnt(0)")
    e("L_final:")
    e("s_barrier   ; E1b")
    e("ds_read_b128 v[48:51], v11"); e("ds_read_b128 v[52:55], v11 offset:16")
    e("L_final2:")
    e("s_waitcnt lgkmcnt(0)")
    e("s_barrier   ; E2")
    nstamp["l"] = max(nstamp["l"], 5)
    stamp("b")
    for u in range(2):
        e(f"ds_read_b128 v[{32+u*4}:{35+u*4}], v12 offset:{u*16}"); e(f"ds_read_b128 v[{40+u*4}:{43+u*4}], v12 offset:{128 + u*16}")
    P = lambda b, k: f"v[{b+k}:{b+k+1}]"
    Y = 48; T = 56
    for hh in (0, 4):
        e(f"s_waitcnt lgkmcnt({2 if hh == 0 else 0})")
        ks = (hh, hh + 2)
        for k in ks: e(f"v_pk_fma_f32 {P(Y,k)}, {P(Y,k)}, {P(32,k)}, {P(40,k)}")
        for k in ks: e(f"v_pk_mul_f32 {P(T,k)}, {P(Y,k)}, {P(Y,k)}")
        for k in ks: e(f"v_pk_fma_f32 {P(T,k)}, {P(T,k)}, s[28:29], v[14:15]")
        for k in ks: e(f"v_pk_mul_f32 {P(T,k)}, {P(T,k)}, {P(Y,k)}")
        for k in range(hh, hh + 4): e(f"v_exp_f32 v{T+k}, v{T+k}")
    for hh in (0, 4):
        ks = (hh, hh + 2)
        for k in ks: e(f"v_pk_add_f32 {P(T,k)}, {P(T,k)}, 1.0 op_sel_hi:[1,0]")
        for k in range(hh, hh + 4): e(f"v_rcp_f32 v{T+k}, v{T+k}")
    for k in range(0, 8, 2): e(f"v_pk_mul_f32 {P(T,k)}, {P(T,k)}, {P(Y,k)}")
    for k in range(4): e(f"v_cvt_pk_bf16_f32 v{32+k}, v{T+2*k}, v{T+2*k+1}")
    e("buffer_store_dwordx4 v[32:35], v13, s[56:59], s64 offen")
    if probe is not None:
        stamp("b"); e("s_waitcnt vmcnt(0)"); stamp("b"); e("s_waitcnt lgkmcnt(0)")
        if pcyc: e("s_sub_u32 s70, s74, s72"); e(f"s_lshr_b32 s70, s70, {pmul}")
        else: e("s_sub_u32 s70, s70, s68"); e("s_lshl_b32 s70, s70, 1")
        e("s_min_u32 s70, s70, 20000"); e("s_add_u32 s70, s70, 4000")
        e("L_padt:"); e("s_memrealtime s[72:73]"); e("s_waitcnt lgkmcnt(0)"); e("s_sub_u32 s72, s72, s68"); e("s_cmp_lt_u32 s72, s70"); e("s_cbranch_scc1 L_padt")
    if stamps:
        stamp("b"); e("s_waitcnt vmcnt(0)"); stamp("b")
        if mid == "bar": nstamp["c"] = len(N) + 1; assert len(N) <= 15
        n = nstamp["c"]
        e("s_waitcnt lgkmcnt(0)")
        e("s_lshl_b32 s64, s2, 3"); e("s_add_u32 s64, s64, s35"); e("s_lshl_b32 s64, s64, 7"); e("s_add_u32 s64, s64, 0x1000000")
        e("v_mov_b32 v6, s64")
        for i in range(2 * n): e(f"v_mov_b32 v{64+i}, s{70+i}")
        e("s_mov_b64 exec, 1")
        if mid != "bar": e("v_mov_b32 v8, s67"); e("v_mov_b32 v9, 0"); e("global_store_dwordx2 v6, v[8:9], s[16:17] offset:120")
        for i in range(0, 2 * n, 2): e(f"global_store_dwordx2 v6, v[{64+i}:{65+i}], s[16:17] offset:{i*4}")
    nret = nstamp["c"]
    e("s_endpgm")
    e("L_service:")
    nstamp["l"] = 2
    e("v_lshlrev_b32 v7, 3, v0")
    e("s_lshl_b32 s41, s38, 6"); e(f"s_add_u32 s41, s41, {SS}"); e("v_lshl_add_u32 v22, v1, 2, s41")
    stamp("l")
    e("s_cmp_lg_u32 s35, 3"); e("s_cbranch_scc1 L_flagdone"); e("s_mov_b32 s67, 0x4000")
    e("s_waitcnt lgkmcnt(0)"); e("s_load_dwordx2 s[50:51], s[16:17], s47"); e("s_waitcnt lgkmcnt(0)")
    e("L_flag:"); e("s_and_b32 s40, s50, s51"); e("s_bitcmp1_b32 s40, 4"); e("s_cbranch_scc1 L_flagok")
    e("s_sleep 4"); e("s_mov_b64 s[50:51], 0"); e("s_atomic_add_x2 s[50:51], s[16:17], s47 glc"); e("s_sub_u32 s67, s67, 1"); e("s_cmp_lg_u32 s67, 0"); e("s_waitcnt lgkmcnt(0)"); e("s_cbranch_scc1 L_flag")
    e("L_flagok:")
    e("s_cmp_eq_u32 s30, 0"); e("s_cselect_b32 s40, s50, s51"); e("s_or_b32 s41, s18, s19"); e("s_lshl_b32 s41, s41, 4")
    e("s_cmp_eq_u32 s40, s41"); e(f"s_cselect_b32 s40, {1 if fast else 0}, 0")
    e("v_mov_b32 v27, s40"); e(f"v_mov_b32 v26, {MODE}"); e("ds_write_b32 v26, v27"); e("s_waitcnt lgkmcnt(0)")
    e("L_flagdone:")
    e("v_lshlrev_b32 v20, 16, v20"); e("v_lshlrev_b32 v21, 16, v21")
    e("s_barrier   ; E0")
    e("s_cmp_ge_u32 s35, 2")
    e("s_barrier   ; E1")
    stamp("l")
    e("s_cbranch_scc1 L_final")
    FR = 32
    ld = [f"buffer_load_dwordx2 v[{FR+2*i}:{FR+2*i+1}], v7, s[60:63], s43 offen offset:{i*512} sc1" for i in range(8)]
    for x in ld: e(x)
    e("s_mov_b32 s67, 0x3fff")
    e("s_barrier   ; E1b")
    e("ds_read_b128 v[48:51], v11"); e("ds_read_b128 v[52:55], v11 offset:16")
    e("L_poll:")
    for i in range(4):
        e(f"s_waitcnt vmcnt({6 - 2*i})"); e(f"v_pk_add_f32 {PK(56+2*i)}, {PK(FR+4*i)}, {PK(FR+4*i+2)}")
        if i & 1: e(f"v_pk_add_f32 {PK(56+2*i-2)}, {PK(56+2*i-2)}, {PK(56+2*i)}")
    e("v_pk_add_f32 v[28:29], v[56:57], v[60:61]")
    e("s_nop 0")
    e("v_cmp_u_f32 vcc, v28, v29"); e("s_cbranch_vccnz L_pollchk")
    e("L_pollok:")
    stamp("l")
    e("v_permlane32_swap_b32 v28, v29"); e("v_add_f32 v28, v28, v29")
    e(f"v_mul_f32 v28, {hex(f2u(1.0/1993))}, v28")
    e("v_mov_b32 v29, v28"); e("s_nop 1"); e("v_permlane16_swap_b32 v28, v29"); e("v_add_f32 v28, v28, v29")
    e("v_mov_b32 v29, v28"); e("s_nop 1"); e("v_permlane32_swap_b32 v28, v29   ; v28 = mean, v29 = E[h^2]")
    e("v_fma_f32 v29, -v28, v28, v29"); e("v_max_f32 v29, 0, v29"); e(f"v_add_f32 v29, {hex(f2u(1e-5))}, v29"); e("v_rsq_f32 v29, v29")
    e("s_nop 0")
    e("v_mul_f32 v30, v29, v20   ; scale"); e("v_fma_f32 v31, -v28, v30, v21  ; shift")
    e("ds_write2_b32 v22, v30, v31 offset0:0 offset1:32")
    e("s_branch L_final2")
    e("L_pollchk:")
    e(f"v_max3_u32 v4, v{FR}, v{FR+1}, v{FR+2}"); e(f"v_max3_u32 v5, v{FR+3}, v{FR+4}, v{FR+5}")
    for i in range(6, 14, 4):
        e(f"v_max3_u32 v4, v4, v{FR+i}, v{FR+i+1}"); e(f"v_max3_u32 v5, v5, v{FR+i+2}, v{FR+i+3}")
    e(f"v_max3_u32 v4, v4, v{FR+14}, v{FR+15}"); e("v_max_u32 v4, v4, v5")
    e("v_cmp_eq_u32 vcc, -1, v4"); e("s_cbranch_vccz L_pollok")
    e("s_sub_u32 s67, s67, 1"); e("s_cbranch_scc1 L_pollok")
    for x in ld: e(x)
    e("s_branch L_poll")
    e("L_rcvslow:"); e("s_mov_b32 s67, 0x4000")
    e("L_rcvloop:")
    for i in rl: e(i)
    e("s_sub_u32 s67, s67, 1"); e("s_waitcnt vmcnt(0)"); e("s_cbranch_scc1 L_rcvend")
    for i in chk: e(i)
    e("s_cbranch_vccnz L_rcvloop")
    e("L_rcvend:"); e("s_cmp_eq_u32 s49, 31"); e("s_branch L_rcvok")
    e("L_pubfar:"); e("buffer_store_dword v28, v25, s[60:63], s46 offen sc1"); e("s_branch L_pubok")
    e("L_mask:   ; last tile: only rows 0..8 exist (lanes with g = 0)")
    e(f"v_pk_add_f32 v[28:29], {PK(A)}, {PK(A+4)}"); e(f"v_pk_mul_f32 v[30:31], {PK(A)}, {PK(A)}"); e(f"v_pk_fma_f32 v[30:31], {PK(A+4)}, {PK(A+4)}, v[30:31]")
    for b in (A + 8, A + 12): e(f"v_pk_add_f32 v[28:29], v[28:29], {PK(b)}"); e(f"v_pk_fma_f32 v[30:31], {PK(b)}, {PK(b)}, v[30:31]")
    e(f"v_add_f32 v28, v28, v{A+2}"); e(f"v_fma_f32 v30, v{A+2}, v{A+2}, v30")
    e("v_cmp_eq_u32 vcc, 0, v2"); e("s_nop 1")
    for r in range(28, 32): e(f"v_cndmask_b32 v{r}, 0, v{r}, vcc")
    e("s_branch L_maskok")
    tailL = L[loader_mark + 1:]; del L[loader_mark:]
    def free_after(it):
        if it[0] != "w" or it[1] < NSLOT: return -1
        n = it[1]
        if n < 51: keys = [k for k in opidx if k[0] == "w" and k[2] == n - NSLOT]
        else: keys = [k for k in opidx if k[0] == "x" and k[2] == 0]
        m_ = max(opidx[k] for k in keys)
        for b, d in enumerate(bar_done):
            if d >= m_: return b
        raise Exception(f"slot for {it} never freed")
    I = 0; plan = []
    for k, n in enumerate(N):
        ld_ = lead[min(k, len(lead) - 1)] if isinstance(lead, (list, tuple)) else lead
        tgt = min(len(items), n + ld_)
        while I < tgt and free_after(items[I]) < k:
            issue(items[I]); I += 1
            if I == 9: epi_once()
        assert I >= n, (k, I, n)
        plan.append((k, n, I))
        e(f"s_waitcnt vmcnt({I - n})")
        bstamp(k)
        e(f"s_barrier   ; stage {k}")
        if k == 0:
            e("s_cmp_lg_u32 s31, 0"); e("s_cbranch_scc1 L_noroot2")
            e("s_waitcnt lgkmcnt(0)"); e("s_mov_b32 s4, 1"); e("s_atomic_add s4, s[14:15], s33"); e("L_noroot2:")
        if k == flag_bar - 1: e("s_load_dword s6, s[14:15], s33")
        if k == flag_bar:
            e("s_cmp_lg_u32 s35, 3"); e("s_cbranch_scc1 L_noflag")
            e("s_mov_b32 s7, 0x4000"); e("s_waitcnt lgkmcnt(0)")
            e("L_root:"); e("s_cmp_lg_u32 s6, 0"); e("s_cbranch_scc1 L_rootok")
            e("s_atomic_add s6, s[14:15], s33 glc"); e("s_sub_u32 s7, s7, 1"); e("s_waitcnt lgkmcnt(0)"); e("s_cbranch_scc0 L_root")
            e("L_rootok:")
            e("s_getreg_b32 s40, hwreg(HW_REG_XCC_ID, 0, 4)"); e("s_mul_i32 s41, s40, s40"); e("s_lshl_b32 s41, s41, 13"); e("s_lshl_b32 s40, s40, 5"); e("s_add_u32 s40, s40, s41"); e("s_add_u32 s40, s40, 1")
            e("s_cmp_eq_u32 s30, 0"); e("s_cselect_b32 s18, s40, 0"); e("s_cselect_b32 s19, 0, s40")
            e("s_atomic_add_x2 s[18:19], s[16:17], s47"); e("L_noflag:")
    e(f"; plan {plan} maxlive {maxlive} waits {nwaits} flagbar {flag_bar} tail {ntail}")
    L += tailL
    e('.section .rodata,"a"'); e(".p2align 6"); e(f".amdhsa_kernel {KN}")
    e(f"  .amdhsa_next_free_vgpr {POOL0 + 4*NPOOL}"); e("  .amdhsa_next_free_sgpr 102"); e(f"  .amdhsa_accum_offset {POOL0 + 4*NPOOL}")
    e("  .amdhsa_group_segment_fixed_size 0"); e("  .amdhsa_kernarg_size 56"); e("  .amdhsa_user_sgpr_count 2")
    e("  .amdhsa_user_sgpr_kernarg_segment_ptr 1"); e("  .amdhsa_system_sgpr_workgroup_id_x 1")
    e("  .amdhsa_float_denorm_mode_32 3")
    e(".end_amdhsa_kernel")
    return "\n".join(L) + "\n", nret
if __name__ == "__main__":
    kw = eval("dict(" + (sys.argv[1] if len(sys.argv) > 1 else "") + ")")
    sys.stdout.write(gen(**kw)[0])
```

```python
import sys, math, struct, subprocess, os, tempfile
KN = "standalone__self_sup_conv_stem_wavlm__speech_kernel"
NWAVES = 8
HEADER = """; WavLM conv stem: strided conv (implicit GEMM) + GroupNorm over time + GELU(tanh), one launch.
;   32 out(2,1993,256)bf16  40 debug(256 B, zero at entry)  48 ws"""
def f2u(x): return struct.unpack("<I", struct.pack("<f", x))[0]

BP = 1056; XQ = 18 * BP; RING = 4 * XQ; NSLOT = 21
def slotaddr(n):
    return RING + (n % NSLOT) * 4096 if n < 51 else (n - 51) * 4096
SLAB = [(G, par, c, q) for G in range(2) for par in range(2) for c in range(2) for q in range(8 - par)]
HB = RING + 9 * 4096; HP = 144; SS = HB + 128 * HP
PBASE = 0x40000
MODE = RING + NSLOT * 4096
CBASE = 0x20000; CSTR = 4352
C0 = -2.0 * math.sqrt(2.0 / math.pi) * math.log2(math.e); C1 = C0 * 0.044715

DEF_STREAM = "x0 w0 u0 w1-15 u1 x1 c g w16-29 u2 x2 w30-45 u3 x3 w46-59"
DEF_STG = [1, 2, 3, 5, 9, 16, 19, 24, 30, 33, 38, 46, 50, 55, 60]

def addr_of_lines(src):
    d = tempfile.mkdtemp()
    open(d + "/a.s", "w").write(src)
    subprocess.run(["clang", "-x", "assembler", "-target", "amdgcn-amd-amdhsa", "-mcpu=gfx950", "-c", d + "/a.s", "-o", d + "/a.o"], check=True)
    out = subprocess.run(["llvm-objdump", "-d", "--mcpu=gfx950", d + "/a.o"], capture_output=True, text=True).stdout
    res = []; on = False
    for ln in out.splitlines():
        if "<L_compute>:" in ln: on = True; base = int(ln.split()[0], 16)
        elif on and "//" in ln: res.append(int(ln.split("//")[1].split(":")[0], 16) - base)
    return res

def gen(warm=True, **kw):
    src, n = gen1(pads=None, warm=warm, **kw)
    if not warm: return src, n
    lines = src.split("\n")
    i0 = lines.index("L_compute:")
    isins = lambda s: s and not s.startswith((";", ".", " .")) and not s.endswith(":") and not s.startswith("  .")
    idx = [i for i in range(i0, len(lines)) if isins(lines[i])]
    ad = addr_of_lines(src.replace("L_pad1", "L_compute").replace("L_pad2", "L_compute"))
    extra = 0
    ins = []
    for p in (1, 2):
        k = next(k for k, a in enumerate(ad) if a + extra >= 4096 * p)
        ins.append((idx[k], p)); extra += 4
    for i, p in reversed(ins):
        lines[i:i] = [f"L_pad{p}:", "s_cbranch_execz L_compute"]
    return "\n".join(lines), n

def gen1(pads, warm, stamps=False, D=8, gs=1, lag=22, stream=DEF_STREAM, stg=None, lead=11, ntx="", ntw="", ntt="",
         rcv=436, rchk=462, prio=1, probe=None, pcyc=False, mid=False, wage=5, e0=None, fast=True, gl=4, pmul=3, glS=3, fb=None, noclear=False, grot=0, gmode='all', defer=False, D0=None, keepx=2, pm=True, pipe=True, dupf=True, g0=8, sstat=True, early=True, zz=True, one=(), npool=40, fchk=2, ofl=''):
    L = []; e = L.append
    e(HEADER)
    e("; @launch grid=(256,1,1) block=(512,1,1) lds=163840")
    e('.amdgcn_target "amdgcn-amd-amdhsa--gfx950"')
    e(".text"); e(f".globl {KN}"); e(".p2align 8"); e(f".type {KN},@function"); e(f"{KN}:")
    nstamp = {"l": 0, "c": 0}
    clk = 's_memrealtime' if stamps == 'rt' else 's_memtime'
    def bstamp(k):
        if mid == "bar": e(f"{clk} s[{72+2*k}:{73+2*k}]")
    def stamp(role):
        if mid == "bar" and (nstamp["c"] or nstamp["l"]): return
        if role == "b":
            n = max(nstamp.values()); nstamp["l"] = nstamp["c"] = n + 1
        else:
            n = nstamp[role]; nstamp[role] += 1
        if stamps and (mid != "ends" or n in (0, 7)): e(f"{clk} s[{70+2*n}:{71+2*n}]")
        if probe is not None:
            if n == 0: e("s_memrealtime s[68:69]"); e("s_memtime s[72:73]"); e("s_memrealtime s[70:71]"); e("s_memtime s[74:75]")
            elif (role, n) == probe or (role == "b" and n == probe[1]): e("s_memrealtime s[70:71]"); e("s_memtime s[74:75]")
    items = []
    for tok in stream.split():
        k = tok[0]
        if k == "x":
            if "." in tok: qq, i = tok[1:].split("."); items.append(("x", int(qq), int(i)))
            else: items += [("x", int(tok[1:]), i) for i in range(5)]
        elif k == "w":
            a, _, b = tok[1:].partition("-"); items += [("w", n) for n in range(int(a), int(b or a) + 1)]
        elif k == "u": items.append((k, int(tok[1:])))
        elif k == "g": items += [("g", 0), ("g", 1)]
        elif k == "p": items.append(("p", 0))
        elif k == "c": items += [("c", int(tok[1:]))] if tok[1:] else [("c", 0), ("c", 1), ("c", 2)]
    pos = {it: i for i, it in enumerate(items)}
    assert all(("w", n) in pos for n in range(60)) and all(("x", q, i) in pos for q in range(4) for i in range(5)) and (noclear or all(("c", i) in pos for i in range(3)))
    has_u = any(it[0] == "u" for it in items)
    nf = 60 - lag
    mf = []
    for kind, rng in (("F", range(0, nf)), ("S", range(nf, 60)), ("K", range(nf, 60))):
        halves = ["S", "K"] if kind == "F" else [kind]
        groups = []
        for n in rng:
            g_ = gs if isinstance(gs, int) else gs[kind]
            if n < g0 or (kind != "K" and (n in one or n - 1 in one)): g_ = 1
            if groups and SLAB[groups[-1][0]][:3] == SLAB[n][:3] and len(groups[-1]) < g_: groups[-1].append(n)
            else: groups.append([n])
        gl_ = {"S": glS, "K": gl, "F": 1}[kind]
        if gl_ > 1:
            tailn = list(rng)[-gl_:]
            groups = [[n for n in g if n not in tailn] for g in groups]; groups = [g for g in groups if g] + [tailn]
        xp = "K" if kind == "K" else "A"
        for grp in groups:
            unit = lambda n: SLAB[n][0] * 4 + SLAB[n][1] * 2 + SLAB[n][2]
            xkey = lambda n, j: ("x", "A" if unit(n) >= 8 - keepx else xp, SLAB[n][0], SLAB[n][1], SLAB[n][2], SLAB[n][3] + j)
            if len(grp) == 1:
                for hi, h in enumerate(halves):
                    for j in (range(4) if not (zz and hi) else range(3, -1, -1)): mf.append((h, j, xkey(grp[0], j), ("w", h, grp[0])))
            elif zz:
                fwd = True
                for j in range(4):
                    for h in (halves if j % 2 == 0 else halves[::-1]):
                        for n in (grp if fwd else grp[::-1]): mf.append((h, j, xkey(n, j), ("w", h, n)))
                        fwd = not fwd
            else:
                for j in range(4):
                    for h in halves:
                        for n in grp: mf.append((h, j, xkey(n, j), ("w", h, n)))
    assert len(mf) == 480
    first = {}; last = {}
    for i, (h, j, xk, wk) in enumerate(mf):
        for k in (wk, xk):
            first.setdefault(k, i); last[k] = i
    rq = []
    for k in sorted(first, key=lambda k: (first[k], k[0] == "x")):
        rq += [(k, 0)] if k[0] == "x" else [(k, 0), (k, 1)]
    def need_item(k):
        if k[0] == "w": return pos[("w", k[2])]
        return max(pos[("x", k[2] * 2 + k[3], i)] for i in range(5))
    if stg is None: stg = DEF_STG
    N = []
    for s in stg:
        n = max(pos[("w", i)] for i in range(s)) + 1
        G, par = SLAB[s - 1][:2]
        n = max(n, max(pos[("x", qq, i)] for qq in range(G * 2 + par + 1) for i in range(5)) + 1)
        N.append(n)
    N[-1] = len(items)
    def stage_of(k):
        ni = need_item(k)
        for s, n in enumerate(N):
            if ni < n: return s
    flag_bar = min(s for s, n in enumerate(N) if max(pos[("c", i)] for i in range(3) if ("c", i) in pos) < n)
    if fb is not None:
        assert fb >= flag_bar or noclear
        flag_bar = fb
    stamp("b")
    e("s_load_dwordx4 s[4:7], s[0:1], 0")
    if stamps: e("s_mov_b32 s67, 0x4000")
    e("s_cmp_ge_u32 s2, 256"); e("s_cbranch_scc1 L_exit")
    e("v_readfirstlane_b32 s35, v0")
    e("s_load_dwordx8 s[8:15], s[0:1], 16"); e("s_load_dwordx2 s[16:17], s[0:1], 48")
    e("v_and_b32 v0, 63, v0"); e("s_lshr_b32 s35, s35, 6   ; wave")
    e("s_cmp_lt_u32 s35, 4"); e("s_cbranch_scc1 L_loader")
    if warm:
        e("s_mov_b64 exec, 0")
        e("s_cmp_eq_u32 s35, 5"); e("s_cbranch_scc1 L_pad1"); e("s_cmp_eq_u32 s35, 6"); e("s_cbranch_scc1 L_pad2"); e("s_cmp_eq_u32 s35, 7"); e("s_cbranch_scc1 L_service")
    e("s_branch L_compute")
    e("L_exit:"); e("s_endpgm")
    e("L_loader:")
    def ids():
        e("s_and_b32 s30, s2, 1   ; kh"); e("s_bfe_u32 s34, s2, 0x10001   ; b"); e("s_bfe_u32 s31, s2, 0x10002"); e("s_xor_b32 s31, s31, s34  ; nth")
        e("s_bfe_u32 s32, s2, 0x40003   ; mt"); e("s_lshr_b32 s33, s2, 7   ; ntl"); e("s_lshl_b32 s36, s31, 1"); e("s_add_u32 s36, s36, s33   ; nt")
    def common_epi_setup():
        e("v_and_b32 v1, 15, v0   ; n"); e("v_lshrrev_b32 v2, 4, v0   ; g")
        e("s_mul_i32 s41, s34, 1020416"); e("s_add_u32 s56, s12, s41"); e("s_addc_u32 s57, s13, 0"); e("s_mov_b32 s58, 1020416"); e("s_mov_b32 s59, 0x20000")
        e("s_mov_b32 s60, s16"); e("s_mov_b32 s61, s17"); e(f"s_mov_b32 s62, {PBASE + 256*8192}"); e("s_mov_b32 s63, 0x20000")
        e("s_lshl_b32 s42, s34, 2"); e("s_add_u32 s42, s42, s36"); e("s_lshl_b32 s33, s42, 2"); e(f"s_mul_i32 s47, s42, {CSTR}"); e(f"s_add_u32 s47, s47, {CBASE}"); e("s_lshl_b32 s42, s42, 1"); e("s_add_u32 s42, s42, s30   ; group16")
        e("s_and_b32 s38, s35, 1   ; c"); e("s_bfe_u32 s39, s35, 0x10001   ; a")
        e("s_lshl_b32 s43, s42, 13"); e("s_lshl_b32 s41, s38, 12"); e("s_add_u32 s43, s43, s41")
        e("s_lshl_b32 s49, s32, 1"); e("s_add_u32 s49, s49, s39"); e("s_lshl_b32 s46, s49, 7"); e("s_add_u32 s46, s46, s43")
        e("s_lshl_b32 s65, s2, 13"); e("s_and_b32 s41, s35, 3"); e("s_lshl_b32 s41, s41, 11"); e("s_add_u32 s65, s65, s41")
        e(f"s_add_u32 s65, s65, {PBASE}   ; outbox"); e("s_xor_b32 s45, s65, 0x2000   ; inbox")
        e("v_lshlrev_b32 v24, 4, v0")
        e("v_lshrrev_b32 v25, 1, v2"); e("v_lshlrev_b32 v25, 2, v25"); e("v_lshl_add_u32 v25, v1, 3, v25")
        e("v_lshrrev_b32 v14, 2, v0   ; rr"); e("v_and_b32 v15, 3, v0   ; c4")
        e(f"v_mul_u32_u24 v11, {HP}, v14"); e("v_lshl_add_u32 v11, v15, 5, v11"); e(f"s_mul_i32 s41, s35, {16*HP}"); e(f"s_add_u32 s41, s41, {HB}"); e("v_add_u32 v11, s41, v11")
        e("v_lshlrev_b32 v12, 5, v15"); e(f"v_add_u32 v12, {SS}, v12")
        e("v_lshlrev_b32 v13, 9, v14"); e("v_lshl_add_u32 v13, v15, 4, v13")
        e("s_lshl_b32 s55, s36, 7"); e("s_lshl_b32 s41, s30, 6"); e("s_add_u32 s55, s55, s41")
        e("s_lshl_b32 s64, s32, 16"); e("s_lshl_b32 s41, s35, 13"); e("s_add_u32 s64, s64, s41"); e("s_add_u32 s64, s64, s55")
        e(f"v_mov_b32 v14, {hex(f2u(C0))}"); e(f"v_mov_b32 v15, {hex(f2u(C0))}"); e(f"s_mov_b32 s28, {hex(f2u(C1))}"); e(f"s_mov_b32 s29, {hex(f2u(C1))}")
    ids()
    e("v_lshrrev_b32 v3, 3, v0  ; r"); e("v_and_b32 v4, 7, v0   ; pos")
    e("v_and_b32 v5, 3, v3"); e("v_lshlrev_b32 v5, 10, v5"); e("v_lshl_add_u32 v5, v4, 4, v5")
    e("v_lshrrev_b32 v6, 5, v0"); e("v_lshl_add_u32 v8, v6, 16, v5"); e("s_lshl_b32 s38, s35, 12"); e("v_add_u32 v8, s38, v8")
    e("s_and_b32 s39, s35, 1"); e("s_lshr_b32 s37, s35, 1"); e("s_lshl_b32 s40, s39, 16"); e("s_lshl_b32 s41, s37, 12"); e("s_add_u32 s40, s40, s41"); e("s_add_u32 s40, s40, 0x10000"); e("v_add_u32 v9, s40, v5")
    e("s_lshl_b32 s40, s39, 2"); e("v_and_b32 v7, 2, v3"); e("v_xor_b32 v7, v7, v4"); e("v_xor_b32 v7, s40, v7"); e("v_lshlrev_b32 v7, 4, v7")
    e("v_lshl_add_u32 v7, v3, 9, v7"); e("v_add_u32 v10, s38, v7   ; w loads")
    e("s_lshl_b32 s44, s30, 16"); e("s_lshl_b32 s41, s36, 7"); e("s_add_u32 s44, s44, s41")
    if grot:
        e(f"s_bfe_u32 s50, s2, {hex(0x10000 + grot)}"); e("s_lshl_b32 s41, s50, 15"); e("s_add_u32 s52, s44, s41"); e("s_xor_b32 s66, s52, 0x8000")
    e("s_lshl_b32 s48, s32, 17"); e("s_lshl_b32 s41, s30, 8"); e("s_add_u32 s48, s48, s41")
    if grot:
        e("s_lshl_b32 s41, s50, 7"); e("s_add_u32 s50, s48, s41"); e("s_xor_b32 s3, s50, 128")
    e(f"s_mul_i32 s51, s35, {BP}   ; X m0 base")
    e(f"s_mul_i32 s53, s37, {BP}"); e("s_lshl_b32 s41, s39, 9"); e("s_add_u32 s53, s53, s41")
    e("s_lshl_b32 s54, s35, 10   ; W m0 base")
    if has_u:
        e("s_lshl_b32 s41, s32, 1"); e("s_add_u32 s41, s41, s39"); e("s_lshl_b32 s40, s37, 5"); e("s_add_u32 s41, s41, s40"); e("s_lshl_b32 s41, s41, 9")
        e("v_lshl_add_u32 v17, v4, 18, s41   ; w L2 prefetch")
    late = []; svc = []
    if early:
        m0_ = len(L); common_epi_setup()
        k_ = L.index("s_mul_i32 s41, s34, 1020416", m0_); late += L[k_:k_ + 3]; del L[k_:k_ + 3]
        k_ = L.index("s_mov_b32 s60, s16", m0_); del L[k_:k_ + 2]
        k_ = L.index("s_mov_b32 s58, 1020416", m0_); svc = late + L[k_:k_ + 2]; late = []; del L[k_:k_ + 2]
        k_ = L.index("v_lshrrev_b32 v14, 2, v0   ; rr", m0_); k2 = L.index("s_lshl_b32 s55, s36, 7", m0_); svc += L[k_:k2]; del L[k_:k2]
        k_ = L.index("s_lshl_b32 s55, s36, 7", m0_); late += L[k_:k_ + 3]; svc += L[k_ + 3:]; del L[k_:]
        for i in range(4, 8): e(f"v_mov_b32 v{i}, -1")
    e("s_mul_i32 s41, s34, 2048000"); e("s_mov_b32 s22, 2048000"); e("s_mov_b32 s23, 0x20000"); e("s_mov_b32 s26, 1966080"); e("s_mov_b32 s27, 0x20000")
    e("s_waitcnt lgkmcnt(0)")
    e("s_add_u32 s20, s4, s41"); e("s_addc_u32 s21, s5, 0"); e("s_mov_b64 s[24:25], s[6:7]")
    stamp("l")
    once = []; once2 = []
    rot = lambda par: grot and (gmode == "all" or par == 1)
    def epi_once():
        if not once:
            once.append(1)
            if early:
                for x in late: e(x)
            else:
                common_epi_setup()
                for i in range(4, 8): e(f"v_mov_b32 v{i}, -1")
            e("s_lshl_b32 s41, s38, 5"); e("s_add_u32 s41, s55, s41"); e("v_lshl_add_u32 v23, v1, 1, s41")
            e("s_or_b32 s31, s32, s30"); e("s_xor_b32 s41, s35, 3"); e("s_or_b32 s31, s31, s41"); e("s_cbranch_scc1 L_noroot")
            e("s_mov_b64 s[4:5], 0"); e("s_atomic_swap_x2 s[4:5], s[16:17], s47 glc"); e("L_noroot:")
    def issue(it):
        if it[0] == "g" or (it[0] == "c" and not early): epi_once()
        if it[0] == "c" and early and not once2: once2.append(1); e("s_mov_b64 s[60:61], s[16:17]")
        if it[0] == "p": e("buffer_load_dword v19, v25, s[60:63], s46 offen sc1")
        if it[0] == "g": e(f"global_load_ushort v{20 + it[1]}, v23, s[{8 + 2*it[1]}:{9 + 2*it[1]}]")
        if it[0] == "w":
            n = it[1]; G, par, c, q = SLAB[n]
            e(f"s_add_u32 m0, s54, {slotaddr(n)}"); e(f"s_add_u32 s40, s44, {(2*q + par)*131072 + (2*G + c)*16384}" if not rot(par) else f"s_add_u32 s40, s{66 if G else 52}, {(2*q + par)*131072 + c*16384}")
            e(f"buffer_load_dwordx4 v10, s[24:27], s40 offen {ntw} lds")
        elif it[0] == "x":
            qq, i = it[1], it[2]; G, par = qq >> 1, qq & 1
            if i < 4:
                e(f"s_add_u32 m0, s51, {qq*XQ + i*4*BP}"); e(f"s_add_u32 s40, s48, {G*128 + par*512 + i*16384}" if not rot(par) else f"s_add_u32 s40, s{3 if G else 50}, {par*512 + i*16384}")
                e(f"buffer_load_dwordx4 v8, s[20:23], s40 offen {ntx} lds")
            else:
                e(f"s_add_u32 m0, s53, {qq*XQ + 16*BP}"); e(f"s_add_u32 s40, s48, {G*128 + par*512}" if not rot(par) else f"s_add_u32 s40, s{3 if G else 50}, {par*512}"); e("s_mov_b32 exec_hi, 0")
                e(f"buffer_load_dwordx4 v9, s[20:23], s40 offen {ntx} lds")
                e("s_mov_b32 exec_hi, -1")
        elif it[0] == "u":
            e(f"s_add_u32 s40, s44, {(it[1] >> 1)*32768 + (it[1] & 1)*131072}" if not rot(it[1] & 1) else f"s_add_u32 s40, s{66 if it[1] >> 1 else 52}, {(it[1] & 1)*131072}"); e("s_mov_b64 exec, 0xff")
            e(f"buffer_load_dword v19, v17, s[24:27], s40 offen {ntt}"); e("s_mov_b64 exec, -1")
        elif it[0] == "c":
            if it[1] < 2: e(f"buffer_store_dwordx4 v[4:7], v24, s[60:63], s65 offen offset:{it[1]*1024} sc1")
            else: e("buffer_store_dword v4, v25, s[60:63], s46 offen sc1")
    loader_mark = len(L); e("@@LOADER@@")
    e("s_branch L_service")
    if warm: e(".p2align 12")
    e("L_compute:")
    if warm: e("s_mov_b64 exec, -1")
    if prio: e(f"s_setprio {prio}")
    ids()
    deferred = []
    if defer:
        e("v_and_b32 v1, 15, v0   ; n"); e("v_lshrrev_b32 v2, 4, v0   ; g"); e("s_and_b32 s38, s35, 1   ; c"); e("s_bfe_u32 s39, s35, 0x10001   ; a")
        m0_ = len(L); common_epi_setup(); deferred += [x for x in L[m0_:] if not x.endswith(("; n", "; g", "; c", "; a"))]; del L[m0_:]
    else:
        e("s_waitcnt lgkmcnt(0)")
        common_epi_setup()
    e(f"v_mul_u32_u24 v3, {BP}, v1"); e("v_lshl_add_u32 v3, v2, 4, v3"); e("s_lshl_b32 s40, s39, 9"); e("v_add_u32 v16, s40, v3")
    e("s_lshl_b32 s40, s30, 1"); e("s_add_u32 s40, s40, s38")
    e("v_bfe_u32 v3, v0, 3, 2"); e("v_xor_b32 v3, s40, v3"); e("v_lshlrev_b32 v3, 5, v3")
    e("v_lshrrev_b32 v4, 2, v1"); e("v_lshl_add_u32 v4, v2, 3, v4"); e("v_lshl_add_u32 v3, v4, 7, v3"); e("v_and_b32 v4, 3, v0"); e("v_lshl_add_u32 v18, v4, 3, v3")
    e("v_xor_b32 v21, 64, v18")
    e(f"v_add_u32 v19, {RING}, v18"); e(f"v_add_u32 v22, {RING}, v21")
    m0_ = len(L)
    e(f"v_add_u32 v20, {RING+65536}, v18"); e(f"v_add_u32 v23, {RING+65536}, v21")
    e(f"v_mul_u32_u24 v26, {16*HP}, v2"); e("v_lshl_add_u32 v26, v1, 2, v26"); e(f"s_mul_i32 s41, s39, {64*HP}"); e("s_lshl_b32 s40, s38, 6"); e("s_add_u32 s41, s41, s40"); e(f"s_add_u32 s41, s41, {HB}"); e("v_add_u32 v26, s41, v26   ; H write")
    e(f"v_add_u32 v17, {8*HP}, v26"); e(f"v_mov_b32 v27, {MODE}")
    if pm:
        e("v_lshrrev_b32 v3, 2, v1"); e("v_and_b32 v4, 1, v0"); e("v_lshlrev_b32 v4, 4, v4"); e("v_mov_b32 v5, 0x3f80"); e("v_lshlrev_b32 v4, v4, v5")
        e("v_cmp_eq_u32 vcc, v3, v2"); e("v_and_b32 v3, 2, v0"); e("v_mov_b32 v88, 0"); e("v_cndmask_b32 v4, 0, v4, vcc")
        e("v_cmp_eq_u32 vcc, 0, v3"); e("v_mov_b32 v89, 0"); e("v_mov_b32 v92, 0"); e("v_cndmask_b32 v90, 0, v4, vcc"); e("v_mov_b32 v93, 0"); e("v_xor_b32 v91, v90, v4")
    if defer:
        deferred = L[m0_:] + deferred; del L[m0_:]
        e("s_waitcnt lgkmcnt(0)")
    ACC = {"K": 32, "S": 48}
    PR = 64; PU = 72
    POOL0 = 96; NPOOL = npool
    free = list(range(NPOOL)); reg = {}
    lds_at = []; done_upto = [0]; cur_stage = [-1]; bar_done = []; opidx = {}
    def barrier():
        cur_stage[0] += 1; k = cur_stage[0]
        if k == 0: stamp("c")
        bstamp(k)
        e(f"s_barrier   ; stage {k}")
        if k == 0: stamp("c")
        bar_done.append(done_upto[0])
    def emit_read(op, i):
        k, part = op
        nb = 0
        while cur_stage[0] < stage_of(k): barrier(); nb += 1
        if part == 0: reg[k] = POOL0 + 4 * free.pop(0)
        r = reg[k]
        if k[0] == "x":
            _, _, G, par, c, s = k
            e(f"ds_read_b128 v[{r}:{r+3}], v16 offset:{(2*G + par)*XQ + (s >> 2)*BP + (s & 3)*128 + c*64}")
        else:
            _, h, n = k
            sa = slotaddr(n)
            bi, off = (0, sa) if sa < RING else ((1, sa - RING) if sa - RING < 65536 else (2, sa - RING - 65536))
            e(f"ds_read_b64_tr_b16 v[{r+2*part}:{r+2*part+1}], v{(18 if h == 'K' else 21) + bi} offset:{off + 512*part}")
        lds_at.append(i); opidx[k] = len(lds_at)
        return 1 + nb
    fq = [(2 + k_, None, x) for k_, x in enumerate(deferred)]
    for j in range(4):
        a = ACC["S"] + 4 * j
        fq += [(0, ("S", j), f"v_cvt_pk_bf16_f32 v{PU+2*j}, v{a}, v{a+1}"), (0, ("S", j), f"v_cvt_pk_bf16_f32 v{PU+2*j+1}, v{a+2}, v{a+3}"),
               (0, None, f"v_min_u32 v{PU+2*j}, -2, v{PU+2*j}"), (0, None, f"v_min_u32 v{PU+2*j+1}, -2, v{PU+2*j+1}")]
        if j & 1: fq.append((0, None, f"buffer_store_dwordx4 v[{PU+2*j-2}:{PU+2*j+1}], v24, s[60:63], s65 offen offset:{(j >> 1)*1024} sc1"))
    e0_at = rcv - 1 if e0 is None else e0
    rl = [f"buffer_load_dwordx4 v[{PR}:{PR+3}], v24, s[60:63], s45 offen sc1", f"buffer_load_dwordx4 v[{PR+4}:{PR+7}], v24, s[60:63], s45 offen offset:1024 sc1"]
    chk = [f"v_max3_u32 v4, v{PR}, v{PR+1}, v{PR+2}", f"v_max3_u32 v5, v{PR+3}, v{PR+4}, v{PR+5}", f"v_max3_u32 v4, v4, v{PR+6}, v{PR+7}", "v_max_u32 v4, v4, v5", "v_cmp_eq_u32 vcc, -1, v4"]
    fq.append((e0_at, None, "@E0")); fq += [(rcv, None, rl[0]), (rcv + 1, None, rl[1])]
    fq += [(rchk - 2, None, "@MODE"), (rchk - 1, None, "s_cmp_eq_u32 s49, 31")]
    fq += [(rchk, None, "s_waitcnt vmcnt(0)")] + [(rchk, None, c) for c in chk] + [(rchk, None, "s_cbranch_vccnz L_rcvslow\nL_rcvok:")]
    A = ACC["K"]
    PK = lambda b: f"v[{b}:{b+1}]"
    if not pm:
        for j in range(4):
            for i in (2 * j, 2 * j + 1):
                fq += [(0, None, f"v_lshlrev_b32 v{PU+2*i}, 16, v{PR+i}"), (0, None, f"v_and_b32 v{PU+2*i+1}, 0xffff0000, v{PR+i}")]
    else:
        for j in range(4): fq.append((0, None, f"@PM{j}"))
    for j in range(4):
        a = A + 4 * j; kk = ("K", j)
        if not pm: fq += [(0, kk, f"v_pk_add_f32 {PK(a)}, {PK(a)}, {PK(PU+4*j)}"), (0, kk, f"v_pk_add_f32 {PK(a+2)}, {PK(a+2)}, {PK(PU+4*j+2)}")]
        if sstat and j < 3:
            if j == 0: fq += [(0, kk, f"v_add_f32 v28, v{a}, v{a+2}"), (0, kk, f"v_add_f32 v29, v{a+1}, v{a+3}"), (0, kk, f"v_mul_f32 v30, v{a}, v{a}"), (0, kk, f"v_mul_f32 v31, v{a+1}, v{a+1}"),
                              (0, kk, f"v_fmac_f32 v30, v{a+2}, v{a+2}"), (0, kk, f"v_fmac_f32 v31, v{a+3}, v{a+3}")]
            else:
                for r in range(4): fq += [(0, kk, f"v_add_f32 v{28 + (r & 1)}, v{28 + (r & 1)}, v{a+r}"), (0, kk, f"v_fmac_f32 v{30 + (r & 1)}, v{a+r}, v{a+r}")]
        elif j == 0: fq += [(0, kk, f"v_pk_add_f32 v[28:29], {PK(a)}, {PK(a+2)}"), (0, None, f"v_pk_mul_f32 v[30:31], {PK(a)}, {PK(a)}"), (0, None, f"v_pk_fma_f32 v[30:31], {PK(a+2)}, {PK(a+2)}, v[30:31]")]
        else:
            for b in (a, a + 2): fq += [(0, kk, f"v_pk_add_f32 v[28:29], v[28:29], {PK(b)}"), (0, None, f"v_pk_fma_f32 v[30:31], {PK(b)}, {PK(b)}, v[30:31]")]
    lastacc = {}
    for i, m_ in enumerate(mf): lastacc[m_[:2]] = i
    line_of_last = {}
    def states_since(key):
        return sum((int(s.split()[1]) + 1 if s.startswith("s_nop") else 1) for s in L[line_of_last[key] + 1:] if not s.endswith(":")) if key in line_of_last else -1
    mode_op = [None]
    def emit_filler(f, i):
        t = f[2]
        if t == "@E0":
            assert cur_stage[0] == len(N) - 1
            assert all(opidx[k] <= done_upto[0] for k in first if k[0] == "w" and 30 <= k[2] < 35)
            e("s_barrier   ; E0"); e("ds_read_b32 v6, v27"); lds_at.append(i); mode_op[0] = len(lds_at)
        elif t.startswith("@PM"):
            j = int(t[3]); a = A + 4 * j
            e(f"v_mfma_f32_16x16x32_bf16 v[{a}:{a+3}], v[{90 - 2*(j & 1)}:{93 - 2*(j & 1)}], v[{PR + 4*(j >> 1)}:{PR + 4*(j >> 1) + 3}], v[{a}:{a+3}]")
            if lastacc[("K", j)] <= i: line_of_last[("K", j)] = len(L) - 1
        elif t == "@MODE":
            assert done_upto[0] >= mode_op[0]
            e("v_readfirstlane_b32 s52, v6")
        else:
            for x in t.split("\n"): e(x)
    started = set(); qi = 0; maxlive = 0; nwaits = 0
    for i, (h, j, xk, wk) in enumerate(mf):
        while qi < len(rq) and first[rq[qi][0]] <= (i + 3 if i == 0 else i):
            emit_read(rq[qi], i - 1); qi += 1
        need = max(opidx[xk], opidx[wk])
        if need > done_upto[0]:
            while need < len(lds_at) and lds_at[need] <= i - wage: need += 1
            n = min(15, len(lds_at) - need)
            e(f"s_waitcnt lgkmcnt({n})"); done_upto[0] = len(lds_at) - n; nwaits += 1
        a = ACC[h] + 4 * j
        c = f"v[{a}:{a+3}]" if (h, j) in started else "0"
        e(f"v_mfma_f32_16x16x32_bf16 v[{a}:{a+3}], v[{reg[xk]}:{reg[xk]+3}], v[{reg[wk]}:{reg[wk]+3}], {c}")
        if lastacc[(h, j)] == i: line_of_last[(h, j)] = len(L) - 1
        started.add((h, j))
        for k in (xk, wk):
            if last[k] == i: free.append((reg[k] - POOL0) // 4)
        nfill = 0
        while qi < len(rq) and free and len(lds_at) - done_upto[0] <= 14 and nfill < 2:
            D_ = D if D0 is None or i >= 40 else D0
            slack = min(first[rq[qi + d][0]] - D_ - d for d in range(min(16, len(rq) - qi)))
            if slack <= i - (2 if nfill else 0):
                nfill += emit_read(rq[qi], i); qi += 1
            else: break
        maxlive = max(maxlive, NPOOL - len(free))
        while fq and nfill < 2 + (1 if i > 466 and not pm else 0) and fq[0][0] <= i and (fq[0][1] is None or states_since(fq[0][1]) >= 8):
            emit_filler(fq.pop(0), i); nfill += 1
        if fq and nfill < 2 and i < 479 and fq[0][0] <= i and fq[0][1] is not None and 0 <= states_since(fq[0][1]) < 7:
            e(f"s_nop {min(2 - nfill, 7 - states_since(fq[0][1])) - 1}")
        if mid is True and i in (119, 239, 299, 359, 419): stamp("c")
    stamp("c")
    ntail = len(fq)
    while fq:
        if fq[0][1] is not None and states_since(fq[0][1]) < 8: e(f"s_nop {7 - states_since(fq[0][1])}"); line_of_last[fq[0][1]] = -100
        emit_filler(fq.pop(0), 480)
    e("s_cbranch_scc1 L_mask"); e("L_maskok:")
    e("v_add_f32 v28, v28, v29"); e("v_add_f32 v30, v30, v31"); e("s_cmp_eq_u32 s52, 0"); e("s_nop 0")
    e("v_permlane32_swap_b32 v28, v30"); e("v_add_f32 v28, v28, v30")
    e("v_mov_b32 v29, v28"); e("s_nop 1"); e("v_permlane16_swap_b32 v28, v29"); e("v_add_f32 v28, v28, v29")
    e("v_min_u32 v28, -2, v28")
    e("s_cbranch_scc1 L_pubfar")
    e("buffer_store_dword v28, v25, s[60:63], s46 offen"); e("L_pubok:")
    e("s_barrier   ; E1")
    stamp("c")
    if prio: e("s_setprio 0")
    for r in range(4):
        for j in (0, 2):
            o = ((4 * (r & 1) + j) * HP) // 4
            e(f"ds_write2_b32 v{26 if r < 2 else 17}, v{A+4*j+r}, v{A+4*j+4+r} offset0:{o} offset1:{o + HP//4}")
    e("s_waitcnt lgkmcnt(0)")
    e("L_final:")
    e("s_barrier   ; E1b")
    e("ds_read_b128 v[48:51], v11"); e("ds_read_b128 v[52:55], v11 offset:16")
    def final_code(first_):
        e("s_waitcnt lgkmcnt(0)")
        e("s_barrier   ; E2")
        if first_:
            nstamp["l"] = max(nstamp["l"], 5); stamp("b")
        for u in range(2):
            e(f"ds_read_b128 v[{32+u*4}:{35+u*4}], v12 offset:{u*16}"); e(f"ds_read_b128 v[{40+u*4}:{43+u*4}], v12 offset:{128 + u*16}")
        P = lambda b, k: f"v[{b+k}:{b+k+1}]"
        Y = 48; T = 56
        for hh in (0, 4):
            e(f"s_waitcnt lgkmcnt({2 if hh == 0 else 0})")
            ks = (hh, hh + 2)
            for k in ks: e(f"v_pk_fma_f32 {P(Y,k)}, {P(Y,k)}, {P(32,k)}, {P(40,k)}")
            for k in ks: e(f"v_pk_mul_f32 {P(T,k)}, {P(Y,k)}, {P(Y,k)}")
            for k in ks: e(f"v_pk_fma_f32 {P(T,k)}, {P(T,k)}, s[28:29], v[14:15]")
            for k in ks: e(f"v_pk_mul_f32 {P(T,k)}, {P(T,k)}, {P(Y,k)}")
            for k in range(hh, hh + 4): e(f"v_exp_f32 v{T+k}, v{T+k}")
        for hh in (0, 4):
            ks = (hh, hh + 2)
            for k in ks: e(f"v_pk_add_f32 {P(T,k)}, {P(T,k)}, 1.0 op_sel_hi:[1,0]")
            for k in range(hh, hh + 4): e(f"v_rcp_f32 v{T+k}, v{T+k}")
        for k in range(0, 8, 2): e(f"v_pk_mul_f32 {P(T,k)}, {P(T,k)}, {P(Y,k)}")
        for k in range(4): e(f"v_cvt_pk_bf16_f32 v{32+k}, v{T+2*k}, v{T+2*k+1}")
        e(f"buffer_store_dwordx4 v[32:35], v13, s[56:59], s64 offen {ofl}")
    e("L_final2:")
    final_code(True)
    e("L_fin:")
    if probe is not None:
        stamp("b"); e("s_waitcnt vmcnt(0)"); stamp("b"); e("s_waitcnt lgkmcnt(0)")
        if pcyc: e("s_sub_u32 s70, s74, s72"); e(f"s_lshr_b32 s70, s70, {pmul}")
        else: e("s_sub_u32 s70, s70, s68"); e("s_lshl_b32 s70, s70, 1")
        e("s_min_u32 s70, s70, 20000"); e("s_add_u32 s70, s70, 4000")
        e("L_padt:"); e("s_memrealtime s[72:73]"); e("s_waitcnt lgkmcnt(0)"); e("s_sub_u32 s72, s72, s68"); e("s_cmp_lt_u32 s72, s70"); e("s_cbranch_scc1 L_padt")
    if stamps:
        stamp("b"); e("s_waitcnt vmcnt(0)"); stamp("b")
        if mid == "bar": nstamp["c"] = len(N) + 1; assert len(N) <= 15
        n = nstamp["c"]
        e("s_waitcnt lgkmcnt(0)")
        e("s_lshl_b32 s64, s2, 3"); e("s_add_u32 s64, s64, s35"); e("s_lshl_b32 s64, s64, 7"); e("s_add_u32 s64, s64, 0x1000000")
        e("v_mov_b32 v6, s64")
        for i in range(2 * n): e(f"v_mov_b32 v{64+i}, s{70+i}")
        e("s_mov_b64 exec, 1")
        if mid != "bar": e("v_mov_b32 v8, s67"); e("v_mov_b32 v9, 0"); e("global_store_dwordx2 v6, v[8:9], s[16:17] offset:120")
        for i in range(0, 2 * n, 2): e(f"global_store_dwordx2 v6, v[{64+i}:{65+i}], s[16:17] offset:{i*4}")
    nret = nstamp["c"]
    e("s_endpgm")
    e("L_service:")
    if warm: e("s_cbranch_execz L_compute")
    nstamp["l"] = 2
    for x in svc: e(x)
    e("v_lshlrev_b32 v7, 3, v0")
    e("s_lshl_b32 s41, s38, 6"); e(f"s_add_u32 s41, s41, {SS}"); e("v_lshl_add_u32 v22, v1, 2, s41")
    stamp("l")
    e("s_cmp_lg_u32 s35, 3"); e("s_cbranch_scc1 L_flagdone"); e("s_mov_b32 s67, 0x4000")
    e("s_waitcnt lgkmcnt(0)"); e("s_mov_b64 s[50:51], s[4:5]")
    e("L_flag:"); e("s_and_b32 s40, s50, s51"); e("s_bitcmp1_b32 s40, 4"); e("s_cbranch_scc1 L_flagok")
    e("s_sleep 4"); e("s_mov_b64 s[50:51], 0"); e("s_atomic_add_x2 s[50:51], s[16:17], s47 glc"); e("s_sub_u32 s67, s67, 1"); e("s_cmp_lg_u32 s67, 0"); e("s_waitcnt lgkmcnt(0)"); e("s_cbranch_scc1 L_flag")
    e("L_flagok:")
    e("s_cmp_eq_u32 s30, 0"); e("s_cselect_b32 s40, s50, s51"); e("s_or_b32 s41, s18, s19"); e("s_lshl_b32 s41, s41, 4")
    e("s_cmp_eq_u32 s40, s41"); e(f"s_cselect_b32 s40, {1 if fast else 0}, 0")
    e("v_mov_b32 v27, s40"); e(f"v_mov_b32 v26, {MODE}"); e("ds_write_b32 v26, v27"); e("s_waitcnt lgkmcnt(0)")
    e("L_flagdone:")
    e("v_lshlrev_b32 v20, 16, v20"); e("v_lshlrev_b32 v21, 16, v21")
    e("s_barrier   ; E0")
    e("s_cmp_ge_u32 s35, 2")
    e("s_barrier   ; E1")
    stamp("l")
    e("s_cbranch_scc1 L_final")
    FR = 80; FR2 = 64
    ldf = lambda b: [f"buffer_load_dwordx2 v[{b+2*i}:{b+2*i+1}], v7, s[60:63], s43 offen offset:{i*512} sc1" for i in range(8)]
    ld = ldf(FR)
    def sums(b, younger):
        for i in range(4):
            e(f"s_waitcnt vmcnt({younger + 6 - 2*i})"); e(f"v_pk_add_f32 {PK(56+2*i)}, {PK(b+4*i)}, {PK(b+4*i+2)}")
            if i & 1: e(f"v_pk_add_f32 {PK(56+2*i-2)}, {PK(56+2*i-2)}, {PK(56+2*i)}")
        e("v_pk_add_f32 v[28:29], v[56:57], v[60:61]")
        e("s_nop 0")
        e("v_cmp_u_f32 vcc, v28, v29")
    def exact(b):
        e(f"v_max3_u32 v4, v{b}, v{b+1}, v{b+2}"); e(f"v_max3_u32 v5, v{b+3}, v{b+4}, v{b+5}")
        for i in range(6, 14, 4):
            e(f"v_max3_u32 v4, v4, v{b+i}, v{b+i+1}"); e(f"v_max3_u32 v5, v5, v{b+i+2}, v{b+i+3}")
        e(f"v_max3_u32 v4, v4, v{b+14}, v{b+15}"); e("v_max_u32 v4, v4, v5")
        e("v_cmp_eq_u32 vcc, -1, v4")
    for x in ld: e(x)
    e("s_mov_b32 s67, 0x3fff")
    e("s_barrier   ; E1b")
    e("ds_read_b128 v[48:51], v11"); e("ds_read_b128 v[52:55], v11 offset:16")
    if pipe:
        for x in ldf(FR2): e(x)
    e("L_poll:")
    sums(FR, 8 if pipe else 0)
    e("s_cbranch_vccnz L_pollchk")
    e("L_pollok:")
    stamp("l")
    e("v_permlane32_swap_b32 v28, v29"); e("v_add_f32 v28, v28, v29")
    e(f"v_mul_f32 v28, {hex(f2u(1.0/1993))}, v28")
    e("v_mov_b32 v29, v28"); e("s_nop 1"); e("v_permlane16_swap_b32 v28, v29"); e("v_add_f32 v28, v28, v29")
    e("v_mov_b32 v29, v28"); e("s_nop 1"); e("v_permlane32_swap_b32 v28, v29   ; v28 = mean, v29 = E[h^2]")
    e("v_fma_f32 v29, -v28, v28, v29"); e("v_max_f32 v29, 0, v29"); e(f"v_add_f32 v29, {hex(f2u(1e-5))}, v29"); e("v_rsq_f32 v29, v29")
    e("s_nop 0")
    e("v_mul_f32 v30, v29, v20   ; scale"); e("v_fma_f32 v31, -v28, v30, v21  ; shift")
    e("ds_write2_b32 v22, v30, v31 offset0:0 offset1:32")
    if dupf:
        final_code(False)
        e("s_branch L_fin" if (stamps or probe is not None) else "s_endpgm")
    else: e("s_branch L_final2")
    e("L_pollchk:")
    exact(FR); e("s_cbranch_vccz L_pollok")
    e("s_sub_u32 s67, s67, 1"); e("s_cbranch_scc1 L_pollok")
    for x in ld: e(x)
    if pipe:
        sums(FR2, 8); e("s_cbranch_vccz L_pollok")
        exact(FR2); e("s_cbranch_vccz L_pollok")
        for x in ldf(FR2): e(x)
    e("s_branch L_poll")
    e("L_rcvslow:"); e("s_mov_b32 s67, 0x4000")
    e("L_rcvloop:")
    for i in rl: e(i)
    e("s_sub_u32 s67, s67, 1"); e("s_waitcnt vmcnt(0)"); e("s_cbranch_scc1 L_rcvend")
    for i in chk: e(i)
    e("s_cbranch_vccnz L_rcvloop")
    e("L_rcvend:"); e("s_cmp_eq_u32 s49, 31"); e("s_branch L_rcvok")
    e("L_pubfar:"); e("buffer_store_dword v28, v25, s[60:63], s46 offen sc1"); e("s_branch L_pubok")
    e("L_mask:   ; last tile: only rows 0..8 exist (lanes with g = 0)")
    e(f"v_pk_add_f32 v[28:29], {PK(A)}, {PK(A+4)}"); e(f"v_pk_mul_f32 v[30:31], {PK(A)}, {PK(A)}"); e(f"v_pk_fma_f32 v[30:31], {PK(A+4)}, {PK(A+4)}, v[30:31]")
    for b in (A + 8, A + 12): e(f"v_pk_add_f32 v[28:29], v[28:29], {PK(b)}"); e(f"v_pk_fma_f32 v[30:31], {PK(b)}, {PK(b)}, v[30:31]")
    e(f"v_add_f32 v28, v28, v{A+2}"); e(f"v_fma_f32 v30, v{A+2}, v{A+2}, v30")
    e("v_cmp_eq_u32 vcc, 0, v2"); e("s_nop 1")
    for r in range(28, 32): e(f"v_cndmask_b32 v{r}, 0, v{r}, vcc")
    e("s_branch L_maskok")
    a_ = L.index("L_service:"); b_ = L.index("L_pollchk:")
    L[a_:] = L[b_:] + L[a_:b_]
    tailL = L[loader_mark + 1:]; del L[loader_mark:]
    def free_after(it):
        if it[0] != "w" or it[1] < NSLOT: return -1
        n = it[1]
        if n < 51: keys = [k for k in opidx if k[0] == "w" and k[2] == n - NSLOT]
        else: keys = [k for k in opidx if k[0] == "x" and k[2] == 0]
        m_ = max(opidx[k] for k in keys)
        for b, d in enumerate(bar_done):
            if d >= m_: return b
        raise Exception(f"slot for {it} never freed")
    I = 0; plan = []
    for k, n in enumerate(N):
        ld_ = lead[min(k, len(lead) - 1)] if isinstance(lead, (list, tuple)) else lead
        tgt = min(len(items), n + ld_)
        while I < tgt and free_after(items[I]) < k:
            issue(items[I]); I += 1
            if I == 9: epi_once()
        assert I >= n, (k, I, n)
        plan.append((k, n, I))
        e(f"s_waitcnt vmcnt({I - n})")
        bstamp(k)
        e(f"s_barrier   ; stage {k}")
        if k == 0:
            e("s_cmp_lg_u32 s31, 0"); e("s_cbranch_scc1 L_noroot2")
            e("s_waitcnt lgkmcnt(0)"); e("s_mov_b32 s4, 1"); e("s_atomic_add s4, s[14:15], s33"); e("L_noroot2:")
        if k == flag_bar - 1: e("s_load_dword s6, s[14:15], s33")
        if k == len(N) - 1 - fchk:
            assert k > flag_bar
            e("s_waitcnt lgkmcnt(0)"); e("s_load_dwordx2 s[4:5], s[16:17], s47")
        if k == flag_bar:
            e("s_cmp_lg_u32 s35, 3"); e("s_cbranch_scc1 L_noflag")
            e("s_mov_b32 s7, 0x4000"); e("s_waitcnt lgkmcnt(0)")
            e("L_root:"); e("s_cmp_lg_u32 s6, 0"); e("s_cbranch_scc1 L_rootok")
            e("s_atomic_add s6, s[14:15], s33 glc"); e("s_sub_u32 s7, s7, 1"); e("s_waitcnt lgkmcnt(0)"); e("s_cbranch_scc0 L_root")
            e("L_rootok:")
            e("s_getreg_b32 s40, hwreg(HW_REG_XCC_ID, 0, 4)"); e("s_mul_i32 s41, s40, s40"); e("s_lshl_b32 s41, s41, 13"); e("s_lshl_b32 s40, s40, 5"); e("s_add_u32 s40, s40, s41"); e("s_add_u32 s40, s40, 1")
            e("s_cmp_eq_u32 s30, 0"); e("s_cselect_b32 s18, s40, 0"); e("s_cselect_b32 s19, 0, s40")
            e("s_atomic_add_x2 s[18:19], s[16:17], s47"); e("L_noflag:")
    e(f"; plan {plan} maxlive {maxlive} waits {nwaits} flagbar {flag_bar} tail {ntail}")
    L += tailL
    e('.section .rodata,"a"'); e(".p2align 6"); e(f".amdhsa_kernel {KN}")
    e(f"  .amdhsa_next_free_vgpr {POOL0 + 4*NPOOL}"); e("  .amdhsa_next_free_sgpr 102"); e(f"  .amdhsa_accum_offset {POOL0 + 4*NPOOL}")
    e("  .amdhsa_group_segment_fixed_size 0"); e("  .amdhsa_kernarg_size 56"); e("  .amdhsa_user_sgpr_count 2")
    e("  .amdhsa_user_sgpr_kernarg_segment_ptr 1"); e("  .amdhsa_system_sgpr_workgroup_id_x 1")
    e("  .amdhsa_float_denorm_mode_32 3")
    e(".end_amdhsa_kernel")
    return "\n".join(L) + "\n", nret
if __name__ == "__main__":
    kw = eval("dict(" + (sys.argv[1] if len(sys.argv) > 1 else "") + ")")
    sys.stdout.write(gen(**kw)[0])
```
